```python
import torch

def _softmax(x, axis=-1):
    return torch.softmax(x, dim=axis)
def _gelu(x):
    return torch.nn.functional.gelu(x, approximate="tanh")
def _silu(x):
    return torch.nn.functional.silu(x)
def _sigmoid(x):
    return torch.sigmoid(x)
def _layernorm(x, axis=-1, eps=1e-5):
    m = x.mean(dim=axis, keepdim=True)
    v = x.var(dim=axis, keepdim=True, unbiased=False)
    return (x - m) / torch.sqrt(v + eps)
def _scatter_add(tgt, idx, src, axis=0):
    return tgt.clone().index_add_(axis, idx, src)
def _segment_sum(src, seg, n):
    out = torch.zeros((n,) + src.shape[1:], dtype=src.dtype)
    return out.index_add_(0, seg, src)
def _pad(x, pw):
    flat = tuple(v for pair in reversed(pw) for v in pair)
    return torch.nn.functional.pad(x, flat)

kernel_name = 'gated_mix__linear_attn_block__moe_arch_mod__prompt'

def setup_inputs():

    _w = (lambda a: (lambda t: t.to(torch.bfloat16) if t.is_floating_point() else t)(torch.as_tensor(a)))
    def _A_setup():
        B, S, D = 1, 2048, 1024
        return {
            "x": _w((lambda *s: torch.randn(*s, dtype=torch.bfloat16) * 0.05)(B, S, D)),
            "wqkv": _w((lambda *s: torch.randn(*s, dtype=torch.bfloat16) * 0.8)(D, 3 * D)),
            "wo": _w((lambda *s: torch.randn(*s, dtype=torch.bfloat16) * 0.1)(D, D)),
        }
    _A_in = _A_setup()

    def _B_setup():
        B, S, D, F, C = 1, 2048, 1024, 3584, 1
        return {
            "x": _w((lambda *s: torch.randn(*s, dtype=torch.bfloat16) * 0.05)(B, S, D)),
            "w_r": _w((lambda *s: torch.randn(*s, dtype=torch.bfloat16) * 1.6)(D)),
            "w_gate": _w((lambda *s: torch.randn(*s, dtype=torch.bfloat16) * 0.1)(D, F)),
            "w_up": _w((lambda *s: torch.randn(*s, dtype=torch.bfloat16) * 0.1)(D, F)),
            "w_down": _w((lambda *s: torch.randn(*s, dtype=torch.bfloat16) * 0.1)(F, D)),
        }
    _B_in = _B_setup()

    return {
        "A_x": _A_in["x"],
        "A_wqkv": _A_in["wqkv"],
        "A_wo": _A_in["wo"],
        "B_x": _B_in["x"],
        "B_w_r": _B_in["w_r"],
        "B_w_gate": _B_in["w_gate"],
        "B_w_up": _B_in["w_up"],
        "B_w_down": _B_in["w_down"],
        "gate_w": _w((lambda *s: torch.randn(*s, dtype=torch.bfloat16) * 0.05)(1024) * 16.0),
    }

def reference(A_x, A_wqkv, A_wo, B_x, B_w_r, B_w_gate, B_w_up, B_w_down, gate_w):
    def _A_ref(x, wqkv, wo):
        B, S, D = x.shape
        H = 32; Dh = D // H
        qkv = (lambda x, *d: x.permute(*d))((x @ wqkv).reshape(B, S, 3, H, Dh), 2, 0, 3, 1, 4)
        q, k, v = qkv[0], qkv[1], qkv[2]
        phi = lambda t: torch.where(t > 0, t + 1, torch.exp(t)) + 1e-6
        pq, pk = phi(q), phi(k)
        kv = torch.einsum("bhsd,bhse->bhde", pk, v)
        z = torch.einsum("bhsd->bhd", pk)
        num = torch.einsum("bhqd,bhde->bhqe", pq, kv)
        den = torch.einsum("bhqd,bhd->bhq", pq, z)[..., None] + 1e-6
        o = num / den
        return (lambda x, *d: x.permute(*d))(o, 0, 2, 1, 3).reshape(B, S, D) @ wo

    def _B_ref(x, w_r, w_gate, w_up, w_down):
        B, S, D = x.shape
        C = 1
        r = x @ w_r
        idx = torch.argsort(-r, axis=-1)[:, :C]
        idx_e = (lambda x, n, axis: torch.repeat_interleave(x, n, dim=axis))(idx.reshape(B, C, 1), D, axis=2)
        x_sel = (lambda x, i, axis: torch.take_along_dim(x, i, dim=axis))(x, idx_e, axis=1)
        g = _silu(x_sel @ w_gate)
        u = x_sel @ w_up
        y = (g * u) @ w_down
        r_sel = _sigmoid((lambda x, i, axis: torch.take_along_dim(x, i, dim=axis))(r, idx, axis=1))
        y = y * r_sel.reshape(B, C, 1)
        b_off = (torch.arange(B) * S).reshape(B, 1)
        flat_idx = (idx + b_off).reshape(B * C)
        zero = (x * 0.0).reshape(B * S, D)
        upd = _scatter_add(zero, flat_idx, y.reshape(B * C, D), axis=0)
        return x + upd.reshape(B, S, D)

    x = A_x
    g = _sigmoid((x * gate_w).sum(-1, keepdims=True))
    a = _A_ref(x, A_wqkv, A_wo)
    b = _B_ref(x, B_w_r, B_w_gate, B_w_up, B_w_down)
    return g * a + (1 - g) * b
```

```python
class Asm:
    def __init__(self):
        self.lines = []
        self.vm = []
        self._lbl = 0
        self.issued = 0

    def e(self, s, *a):
        if a:
            s = s % a
        for ln in s.split('\n'):
            ln = ln.strip()
            if not ln:
                continue
            if ln.endswith(':') or ln.startswith('.'):
                self.lines.append(ln)
            else:
                self.lines.append('    ' + ln)

    def c(self, s):
        self.lines.append('    ; ' + s)

    def label(self, base='L'):
        self._lbl += 1
        return '%s_%d' % (base, self._lbl)

    def vm_issue(self, tag, s, *a):
        self.e(s, *a)
        self.vm.append(tag)
        self.issued += 1

    def vm_uncounted(self, s, *a):
        self.e(s, *a)

    def vm_wait(self, tag, extra=''):
        if tag not in self.vm:
            if extra:
                self.e('s_waitcnt ' + extra)
            return
        idx = max(i for i, t in enumerate(self.vm) if t == tag)
        n = len(self.vm) - 1 - idx
        assert n <= 63, n
        self.e('s_waitcnt vmcnt(%d)%s' % (n, (' ' + extra) if extra else ''))
        self.vm = self.vm[idx + 1:]

    def vm_wait_all(self, extra=''):
        self.e('s_waitcnt vmcnt(0)%s' % ((' ' + extra) if extra else ''))
        self.vm = []

    def text(self):
        return '\n'.join(self.lines) + '\n'


def vr(b, n=1):
    return 'v%d' % b if n == 1 else 'v[%d:%d]' % (b, b + n - 1)


def sr(b, n=1):
    return 's%d' % b if n == 1 else 's[%d:%d]' % (b, b + n - 1)


def srd(a, d, base, nbytes):
    a.e('s_mov_b32 s%d, s%d', d, base)
    a.e('s_mov_b32 s%d, s%d', d + 1, base + 1)
    a.e('s_mov_b32 s%d, 0x%x', d + 2, nbytes)
    a.e('s_mov_b32 s%d, 0x00020000', d + 3)


def kd(name, vgpr, sgpr=102):
    acc = (vgpr + 3) // 4 * 4
    return f""".p2align 6
.amdhsa_kernel {name}
  .amdhsa_next_free_vgpr {vgpr}
  .amdhsa_next_free_sgpr {sgpr}
  .amdhsa_accum_offset {acc}
  .amdhsa_group_segment_fixed_size 0
  .amdhsa_kernarg_size 96
  .amdhsa_user_sgpr_count 2
  .amdhsa_user_sgpr_kernarg_segment_ptr 1
  .amdhsa_system_sgpr_workgroup_id_x 1
.end_amdhsa_kernel
"""
```

```python
import sys, os
sys.path.insert(0, os.path.dirname(os.path.abspath(__file__)))
from asmlib import *

NAME = 'gated_mix__linear_attn_block__moe_arch_mod__prompt'

WS_PQ = 0
WS_KV = 4 << 20
WS_Z = WS_KV + 131072
WS_HU = WS_Z + 4096
WS_CNT = WS_HU + 28672
WS_HUDONE = WS_CNT + 8192
ZERO_BYTES = 131072 + 4096 + 28672 + 8192 + 4096
WS_G = WS_HUDONE + 4096
WS_FKEY = WS_G + 8192
WS_YP = WS_FKEY + 1024
WS_END = WS_YP + 64 * 1024 * 4
WS_BYTES = 268435456

STAMPS = os.environ.get('STAMPS', '0') == '1'
FUSE = os.environ.get('FUSE', '1') == '1'
NFIX = int(os.environ.get('NFIX', '0'))
NHS = int(os.environ.get('NHS', '32'))
NSH = int(os.environ.get('NSH', '32'))
WT = ' sc0 sc1' if FUSE else ''
EXP = os.environ.get('EXP', '')
WS_ST = 16 << 20


def stamp(a, idx, real=False):
    if not STAMPS:
        return
    a.e('%s s[%d:%d]', 's_memrealtime' if real else 's_memtime', 72 + 2 * idx, 73 + 2 * idx)


def stamp_flush(a, kern, s_ws, n, vlanes=None):
    if not STAMPS:
        return
    a.e('s_waitcnt lgkmcnt(0)')
    if vlanes is not None:
        a.e('s_lshl_b32 s56, s2, 3')
        a.e('s_add_u32 s56, s56, s3')
        a.e('s_lshl_b32 s56, s56, 8')
        a.e('s_add_u32 s56, s56, %d', WS_ST + ((1 + kern) << 20))
        a.e('v_and_b32 v1, 63, v0')
        a.e('v_lshlrev_b32 v1, 2, v1')
        a.e('v_add_u32 v1, s56, v1')
        a.e('buffer_store_dword v%d, v1, %s, 0 offen', vlanes, sr(s_ws, 4))
    a.e('s_lshl_b32 s56, s2, 3')
    a.e('s_add_u32 s56, s56, s3')
    a.e('s_lshl_b32 s56, s56, 7')
    a.e('s_add_u32 s56, s56, %d', WS_ST + kern * 256 * 8 * 128)
    a.e('v_mov_b32 v1, s56')
    a.e('s_mov_b64 exec, 1')
    for i in range(n):
        a.e('v_mov_b32 v2, s%d', 72 + 2 * i)
        a.e('v_mov_b32 v3, s%d', 73 + 2 * i)
        a.e('buffer_store_dwordx2 v[2:3], v1, %s, 0 offen offset:%d', sr(s_ws, 4), 8 * i)
        a.e('s_nop 1')
    a.e('s_mov_b64 exec, -1')


def lstamp(a, vreg, lane):
    if not STAMPS:
        return
    a.e('s_memtime s[96:97]')
    a.e('s_waitcnt lgkmcnt(0)')
    a.e('v_writelane_b32 v%d, s96, %d', vreg, lane)


LOG2E = 0x3fb8aa3b
EPS6 = 0x358637bd


def phi16(a, acc, out, t0, t1, e0, e1, s_log2e, s_eps, mn):
    for j in range(8):
        a0, a1, p = acc + 2 * j, acc + 2 * j + 1, out + j
        a.e('v_cvt_pk_bf16_f32 v%d, v%d, v%d', p, a0, a1)
        a.e('v_lshlrev_b32 v%d, 16, v%d', t0, p)
        a.e('v_and_b32 v%d, 0xffff0000, v%d', t1, p)
        a.e('v_mul_f32 v%d, s%d, v%d', e0, s_log2e, t0)
        a.e('v_mul_f32 v%d, s%d, v%d', e1, s_log2e, t1)
        a.e('v_exp_f32 v%d, v%d clamp', e0, e0)
        a.e('v_exp_f32 v%d, v%d clamp', e1, e1)
        a.e('v_max_f32 v%d, 0, v%d', t0, t0)
        a.e('v_max_f32 v%d, 0, v%d', t1, t1)
        a.e('v_add_f32 v%d, v%d, v%d', t0, t0, e0)
        a.e('v_add_f32 v%d, v%d, v%d', t1, t1, e1)
        if j == 0:
            a.e('v_min_f32 v%d, v%d, v%d', mn, t0, t1)
        else:
            a.e('v_min3_f32 v%d, v%d, v%d, v%d', mn, t0, t1, mn)
        a.e('v_cvt_pk_bf16_f32 v%d, v%d, v%d', p, t0, t1)
    lab = a.label('phi_done')
    a.e('v_cmp_gt_f32 vcc, 0x3a800000, v%d', mn)
    a.e('s_cbranch_vccz %s', lab)
    for j in range(8):
        p = out + j
        a.e('v_lshlrev_b32 v%d, 16, v%d', t0, p)
        a.e('v_and_b32 v%d, 0xffff0000, v%d', t1, p)
        a.e('v_add_f32 v%d, s%d, v%d', t0, s_eps, t0)
        a.e('v_add_f32 v%d, s%d, v%d', t1, s_eps, t1)
        a.e('v_cvt_pk_bf16_f32 v%d, v%d, v%d', p, t0, t1)
    a.e('%s:', lab)


def wave_reduce(a, regs, op, stmp):
    pats = ['quad_perm:[1,0,3,2]', 'quad_perm:[2,3,0,1]', 'row_half_mirror', 'row_mirror']
    a.e('s_nop 1')
    for p in pats:
        if len(regs) < 3:
            a.e('s_nop 1')
        for r in regs:
            a.e('%s_dpp v%d, v%d, v%d %s row_mask:0xf bank_mask:0xf', op, r, r, r, p)
    a.e('s_nop 1')
    for r in regs:
        for q in range(4):
            a.e('v_readlane_b32 s%d, v%d, %d', stmp + q, r, 16 * q)
        a.e('s_nop 1')
        a.e('v_mov_b32 v%d, s%d', r, stmp)
        for q in range(1, 4):
            a.e('%s v%d, s%d, v%d', op, r, stmp + q, r)


K1_SLOT = 40960
K1_LDS_HP = 3 * K1_SLOT
K1_LDS_KEY = K1_LDS_HP + 16384
K1_LDS_FLG = K1_LDS_KEY + 64
K1_LDS = K1_LDS_KEY + 256
K1_QX = 2 * K1_SLOT
K1_EX = K1_SLOT
PF0 = int(os.environ.get('PF0', '3'))
PB = int(os.environ.get('PB', '12'))
GE = int(os.environ.get('GE', '4'))
RL = int(os.environ.get('RL', '0'))
NPUB = 64


def gen_k1(a):
    S_X, S_W, S_WS, S_DBG, S_WR, S_GW, S_WG, S_WU = 8, 12, 16, 20, 24, 28, 32, 36
    kn = NAME + '_kernel' if FUSE else 'k1_kernel'
    a.e('.globl %s\n.p2align 8\n.type %s,@function\n%s:' % (kn, kn, kn))
    a.e('s_cmp_ge_u32 s2, 256')
    a.e('s_cbranch_scc1 K1_end')
    stamp(a, 0, True); stamp(a, 1)
    if 'code' in EXP:
        a.e('s_getpc_b64 s[56:57]')
        a.e('K1_pc:')
        a.e('v_lshlrev_b32 v1, 6, v0')
        a.e('s_mov_b32 s58, CODE_END-K1_pc-4')
        a.e('v_min_u32 v1, s58, v1')
        a.e('global_load_dword v63, v1, s[56:57]')
    a.e('s_load_dwordx4 s[40:43], s[0:1], 0')
    a.e('s_load_dwordx2 s[44:45], s[0:1], 32')
    a.e('s_load_dwordx4 s[48:51], s[0:1], 40')
    a.e('s_load_dwordx2 s[46:47], s[0:1], 64')
    a.e('s_load_dwordx4 s[52:55], s[0:1], 80')
    a.e('s_load_dwordx2 s[90:91], s[0:1], 56')
    a.e('s_load_dwordx2 s[92:93], s[0:1], 16')
    a.e('v_lshrrev_b32 v1, 6, v0')
    a.e('v_and_b32 v2, 63, v0')
    a.e('s_and_b32 s6, s2, 7')
    a.e('v_readfirstlane_b32 s3, v1')
    a.e('s_lshr_b32 s7, s2, 3')
    a.e('s_and_b32 s4, s6, 1')
    a.e('s_lshl_b32 s4, s4, 3')
    a.e('s_and_b32 s56, s7, 7')
    a.e('s_add_u32 s4, s4, s56')
    a.e('s_lshr_b32 s5, s6, 1')
    a.e('s_lshl_b32 s5, s5, 2')
    a.e('s_lshr_b32 s56, s7, 3')
    a.e('s_add_u32 s5, s5, s56')
    a.e('s_mul_i32 s67, s4, %d', int(os.environ.get('ROTA', '2')))
    a.e('s_mul_i32 s56, s5, %d', int(os.environ.get('ROTB', '0')))
    a.e('s_add_u32 s67, s67, s56')
    if NFIX:
        for _ in range(3):
            a.e('s_cmp_ge_u32 s67, %d', 16 - NFIX)
            a.e('s_cselect_b32 s56, %d, 0', 16 - NFIX)
            a.e('s_sub_u32 s67, s67, s56')
    a.e('v_lshrrev_b32 v6, 3, v2')
    a.e('s_lshl_b32 s57, s3, 3')
    a.e('v_add_u32 v6, s57, v6')
    a.e('s_lshl_b32 s56, s4, 7')
    a.e('v_add_u32 v7, s56, v6')
    a.e('v_lshlrev_b32 v7, 11, v7')
    a.e('v_lshrrev_b32 v8, 4, v2')
    a.e('s_and_b32 s56, s3, 1')
    a.e('s_lshl_b32 s56, s56, 2')
    a.e('v_add_u32 v9, s56, v8')
    a.e('v_and_b32 v10, 7, v2')
    a.e('v_xor_b32 v9, v9, v10')
    a.e('v_lshl_add_u32 v7, v9, 4, v7')
    a.e('s_movk_i32 s56, 6144')
    a.e('v_mul_lo_u32 v6, v6, s56')
    a.e('v_and_b32 v9, 1, v8')
    a.e('v_lshlrev_b32 v9, 2, v9')
    a.e('v_xor_b32 v9, v9, v10')
    a.e('v_lshl_add_u32 v6, v9, 4, v6')
    a.e('s_lshl_b32 s56, s5, 7')
    a.e('v_add_u32 v6, s56, v6')
    a.e('s_mov_b32 s57, 0' if NFIX else 's_and_b32 s57, s67, 15')
    a.e('s_lshl_b32 s59, s57, 7')
    a.e('s_mul_i32 s57, s57, 393216')
    a.e('s_lshl_b32 s58, s3, 10')
    a.e('s_waitcnt lgkmcnt(0)')
    srd(a, S_X, 40, 4194304)
    srd(a, S_W, 42, 6291456)
    if 'nod0' not in EXP:
        for aa in range(2):
            a.e('s_add_u32 m0, s58, %d', aa * 8192)
            a.e('s_add_u32 s56, s59, %d', aa * 131072)
            a.e('buffer_load_dwordx4 v7, %s, s56 offen lds', sr(S_X, 4))
        for ty in range(3):
            a.e('s_add_u32 m0, s58, %d', 16384 + ty * 8192)
            a.e('s_add_u32 s56, s57, %d', ty * 2048)
            a.e('buffer_load_dwordx4 v6, %s, s56 offen lds', sr(S_W, 4))
    a.e('s_mov_b32 s60, 0x%x', LOG2E)
    a.e('s_mov_b32 s61, 0x%x', EPS6)
    srd(a, S_WS, 54, WS_BYTES)
    srd(a, S_DBG, 52, 256)
    srd(a, S_WR, 44, 2048)
    srd(a, S_GW, 46, 2048)
    srd(a, S_WG, 48, 7340032)
    srd(a, S_WU, 50, 7340032)
    FREE0 = int(os.environ.get('FREE0', '224'))
    a.e('s_sub_u32 s88, s2, 32')
    a.e('s_cmp_lt_u32 s2, %d', FREE0 + 32)
    a.e('s_cselect_b32 s88, 255, s88')
    a.e('s_cmp_lt_u32 s2, %d', FREE0)
    a.e('s_cselect_b32 s88, s2, s88')
    a.e('s_cmp_ge_u32 s3, 4')
    a.e('s_cbranch_scc1 K1_helper')

    if 'noscode' not in EXP:
        NS = int(os.environ.get('NS', '4'))
        a.e('s_getpc_b64 s[64:65]')
        a.e('K1_pc2:')
        a.e('s_lshr_b32 s56, s2, 3')
        a.e('s_and_b32 s56, s56, %d', 128 // NS // 4 * 4 // 4 * 1 - 1 if False else (512 // (4 * NS)) - 1)
        a.e('s_lshl_b32 s56, s56, 2')
        a.e('s_add_u32 s56, s56, s3')
        a.e('s_mul_i32 s56, s56, %d', NS * 64)
        a.e('s_mov_b32 s57, CODE_END-K1_pc2-4')
        for q in range(NS):
            a.e('s_min_u32 s58, s56, s57')
            a.e('s_load_dword s89, s[64:65], s58')
            a.e('s_add_u32 s56, s56, 64')
    VAB, VBB, VA, VB = 4, 8, 10, 14
    FR = [16, 36]
    Q = [64, 80]; K = [96, 112]; V = [128, 144]
    a.e('s_and_b32 s6, s3, 1')
    a.e('s_lshr_b32 s7, s3, 1')
    a.e('v_and_b32 v3, 31, v2')
    a.e('s_lshl_b32 s56, s6, 6')
    a.e('v_add_u32 v3, s56, v3')
    a.e('v_lshlrev_b32 v3, 7, v3')
    a.e('v_bfe_u32 v9, v2, 1, 3')
    a.e('v_lshrrev_b32 v15, 5, v2')
    a.e('v_xor_b32 v9, v9, v15')
    for t in range(4):
        a.e('v_xor_b32 v56, %d, v9', 2 * t)
        a.e('v_lshl_add_u32 v%d, v56, 4, v3', VAB + t)
    a.e('v_bfe_u32 v56, v2, 2, 2')
    a.e('v_lshl_add_u32 v57, v15, 3, v56')
    a.e('v_lshlrev_b32 v57, 7, v57')
    a.e('v_lshrrev_b32 v56, 1, v56')
    a.e('v_xor_b32 v56, s7, v56')
    a.e('v_lshl_add_u32 v57, v56, 6, v57')
    a.e('v_bfe_u32 v56, v2, 4, 1')
    a.e('v_lshl_add_u32 v57, v56, 5, v57')
    a.e('v_and_b32 v56, 3, v2')
    a.e('v_lshl_add_u32 v57, v56, 3, v57')
    a.e('v_add_u32 v%d, 16384, v57', VBB)
    for t in range(4):
        a.e('v_mov_b32 v%d, v%d', VA + t, VAB + t)
    a.e('v_mov_b32 v%d, v%d', VB, VBB)
    for r in range(64, 160):
        a.e('v_mov_b32 v%d, 0', r)
    a.e('s_mov_b32 s57, 0')
    a.e('s_mov_b32 s58, 0')
    a.e('s_movk_i32 s62, 99')
    a.e('s_lshl_b32 s56, s3, 2')
    a.e('s_add_u32 s56, s56, %d', K1_LDS_FLG)
    a.e('v_mov_b32 v56, s56')
    a.e('ds_write_b32 v56, v64')
    a.e('v_lshlrev_b32 v56, 4, v2')

    def reads(t, buf):
        f = FR[buf]
        L = []
        L.append('ds_read_b128 %s, v%d' % (vr(f, 4), VA + t))
        for ty in range(3):
            for tt in range(2):
                L.append('ds_read_b64_tr_b16 %s, v%d offset:%d' % (vr(f + 8 + 4 * ty + 2 * tt, 2), VB, ty * 8192 + t * 2048 + tt * 512))
        L.append('ds_read_b128 %s, v%d offset:4096' % (vr(f + 4, 4), VA + t))
        return L

    def mfmas(buf):
        f = FR[buf]
        L = []
        for rb in range(2):
            A = vr(f + 4 * rb, 4)
            L.append('v_mfma_f32_32x32x16_bf16 %s, %s, %s, %s' % (vr(Q[rb], 16), vr(f + 8, 4), A, vr(Q[rb], 16)))
            L.append('v_mfma_f32_32x32x16_bf16 %s, %s, %s, %s' % (vr(K[rb], 16), A, vr(f + 12, 4), vr(K[rb], 16)))
            L.append('v_mfma_f32_32x32x16_bf16 %s, %s, %s, %s' % (vr(V[rb], 16), A, vr(f + 16, 4), vr(V[rb], 16)))
        return L

    a.e('s_barrier')
    a.e('s_waitcnt vmcnt(0)')
    a.e('s_cmp_lg_u32 s3, 1')
    a.e('s_cbranch_scc1 K1_ns')
    for r in range(4):
        a.e('v_mov_b32 v%d, -1', 60 + r)
    a.e('s_lshl_b32 s56, s2, 10')
    a.e('s_add_u32 s56, s56, %d', WS_YP)
    a.e('buffer_store_dwordx4 v[60:63], v56, %s, s56 offen%s' % (sr(S_WS, 4), WT))
    a.e('K1_ns:')
    a.e('s_cmp_lg_u32 s3, 0')
    a.e('s_cbranch_scc1 K1_nz')
    a.e('s_cmp_ge_u32 s2, %d', NPUB)
    a.e('s_cbranch_scc1 K1_nz')
    a.e('s_movk_i32 s62, %d', RL + 8)
    assert ZERO_BYTES == 64 * 2752
    a.e('s_mul_i32 s56, s2, 2752')
    a.e('s_add_u32 s56, s56, %d', WS_KV)
    a.e('buffer_store_dwordx4 v[64:67], v56, %s, s56 offen sc0 sc1' % sr(S_WS, 4))
    a.e('buffer_store_dwordx4 v[64:67], v56, %s, s56 offen offset:1024 sc0 sc1' % sr(S_WS, 4))
    a.e('s_mov_b32 exec_lo, -1\ns_mov_b32 exec_hi, 0xfff')
    a.e('buffer_store_dwordx4 v[64:67], v56, %s, s56 offen offset:2048 sc0 sc1' % sr(S_WS, 4))
    a.e('s_mov_b64 exec, -1')
    a.e('K1_nz:')
    a.e('s_barrier')
    stamp(a, 2)
    for r in reads(0, 0):
        a.e(r)
    a.e('K1_loop:')
    for t in range(4):
        buf = t & 1
        a.e('s_waitcnt lgkmcnt(0)')
        if t == 3:
            if STAMPS:
                a.e('s_memtime s[96:97]')
            a.e('s_barrier')
            if STAMPS:
                a.e('s_memtime s[98:99]')
                a.e('s_waitcnt lgkmcnt(0)')
                a.e('s_mov_b32 m0, s58')
                a.e('s_nop 0')
                a.e('v_writelane_b32 v59, s96, m0')
                a.e('s_add_u32 m0, s58, 16')
                a.e('s_nop 0')
                a.e('v_writelane_b32 v59, s98, m0')
            a.e('s_add_u32 s57, s57, %d', K1_SLOT)
            a.e('s_cmp_eq_u32 s57, %d', 3 * K1_SLOT)
            a.e('s_cselect_b32 s57, 0, s57')
        M = mfmas(buf)
        R = reads((t + 1) & 3, buf ^ 1)
        for i in range(6):
            if 'nomfma' not in EXP:
                a.e(M[i])
            if t == 3 and i == 0:
                for tt in range(4):
                    a.e('v_add_u32 v%d, s57, v%d', VA + tt, VAB + tt)
                a.e('v_add_u32 v%d, s57, v%d', VB, VBB)
            if 'noread' not in EXP:
                if 'rd332' in EXP:
                    for r_ in {0: R[0:3], 1: R[3:6], 2: R[6:8]}.get(i, []):
                        a.e(r_)
                elif 'rd44' in EXP:
                    for r_ in {0: R[0:4], 1: R[4:8]}.get(i, []):
                        a.e(r_)
                elif i < 4:
                    a.e(R[2 * i]); a.e(R[2 * i + 1])
            if t == 3 and i == 4:
                a.e('s_cmp_eq_u32 s58, s62')
                a.e('s_cbranch_scc1 K1_side')
                a.e('K1_side_ret:')
    a.e('s_add_u32 s58, s58, 1')
    a.e('s_cmp_lt_u32 s58, 16')
    a.e('s_cbranch_scc1 K1_loop')
    stamp(a, 3)
    a.e('s_waitcnt lgkmcnt(0)')
    a.e('s_lshl_b32 s56, s3, 13')
    a.e('s_add_u32 s56, s56, %d', K1_QX)
    a.e('v_lshlrev_b32 v3, 4, v2')
    a.e('v_add_u32 v3, s56, v3')
    a.e('s_nop 12')
    for q in range(8):
        a.e('ds_write_b128 v3, %s offset:%d', vr(Q[0] + 4 * q, 4), q * 1024)
    a.e('s_waitcnt lgkmcnt(0)')
    a.e('s_barrier')
    if 'notail' not in EXP and not FUSE:
        srd(a, 24, 90, 7340032)
        srd(a, 28, 92, 2097152)
        a.e('v_lshlrev_b32 v57, 6, v2')
        a.e('s_mul_i32 s56, s2, 28672')
        a.e('s_lshl_b32 s57, s3, 13')
        a.e('s_add_u32 s56, s56, s57')
        a.e('buffer_load_dword v60, v57, s[24:27], s56 offen')
        a.e('s_add_u32 s56, s56, 4096')
        a.e('s_cmp_eq_u32 s3, 3')
        a.e('s_cbranch_scc1 K1_tp1')
        a.e('buffer_load_dword v61, v57, s[24:27], s56 offen')
        a.e('K1_tp1:')
        a.e('s_cmp_ge_u32 s3, 2')
        a.e('s_cbranch_scc1 K1_tp2')
        a.e('s_lshl_b32 s56, s2, 13')
        a.e('s_lshl_b32 s57, s3, 12')
        a.e('s_add_u32 s56, s56, s57')
        a.e('buffer_load_dword v62, v57, s[28:31], s56 offen')
        a.e('K1_tp2:')
    PK = [16, 24]; VBF = [32, 40]; T0, T1, E0, E1, MN = 48, 49, 50, 51, 56
    ONES = 52
    KVA = 160; ZA = 176
    for r in range(4):
        a.e('v_mov_b32 v%d, 0x3f803f80', ONES + r)
    for rb in range(2):
        phi16(a, K[rb], PK[rb], T0, T1, E0, E1, 60, 61, MN)
        for j in range(8):
            a.e('v_cvt_pk_bf16_f32 v%d, v%d, v%d', VBF[rb] + j, V[rb] + 2 * j, V[rb] + 2 * j + 1)
    a.e('s_nop 1')
    first = True
    for rb in range(2):
        for m in range(2):
            ckv = '0' if first else vr(KVA, 16)
            cz = '0' if first else vr(ZA, 16)
            a.e('v_mfma_f32_32x32x16_bf16 %s, %s, %s, %s', vr(KVA, 16), vr(PK[rb] + 4 * m, 4), vr(VBF[rb] + 4 * m, 4), ckv)
            a.e('v_mfma_f32_32x32x16_bf16 %s, %s, %s, %s', vr(ZA, 16), vr(ONES, 4), vr(PK[rb] + 4 * m, 4), cz)
            first = False
    a.e('s_mul_i32 s56, s3, 2304')
    a.e('s_add_u32 s56, s56, %d', K1_EX)
    a.e('v_lshlrev_b32 v3, 4, v2')
    a.e('v_add_u32 v3, s56, v3')
    a.e('v_lshlrev_b32 v4, 2, v2')
    a.e('v_add_u32 v4, s56, v4')
    a.e('s_xor_b32 s59, s3, 1')
    a.e('s_mul_i32 s56, s59, 2304')
    a.e('s_add_u32 s56, s56, %d', K1_EX)
    a.e('v_lshlrev_b32 v5, 4, v2')
    a.e('v_add_u32 v5, s56, v5')
    a.e('v_lshlrev_b32 v6, 2, v2')
    a.e('v_add_u32 v6, s56, v6')
    a.e('s_lshl_b32 s56, s3, 2')
    a.e('s_add_u32 s56, s56, %d', K1_LDS_FLG)
    a.e('v_mov_b32 v9, s56')
    a.e('s_lshl_b32 s56, s59, 2')
    a.e('s_add_u32 s56, s56, %d', K1_LDS_FLG)
    a.e('v_mov_b32 v10, s56')
    a.e('v_mov_b32 v11, 1')
    a.e('s_lshl_b32 s59, s5, 1')
    a.e('s_add_u32 s59, s59, s7')
    a.e('s_lshl_b32 s56, s59, 12')
    a.e('s_add_u32 s56, s56, %d', WS_KV)
    a.e('v_lshlrev_b32 v7, 2, v2')
    a.e('v_add_u32 v7, s56, v7')
    a.e('s_lshl_b32 s56, s59, 7')
    a.e('s_add_u32 s56, s56, %d', WS_Z)
    a.e('v_and_b32 v8, 31, v2')
    a.e('v_lshlrev_b32 v8, 2, v8')
    a.e('v_add_u32 v8, s56, v8')
    a.e('s_nop 7')

    def pair_sync(tag):
        a.e('s_waitcnt lgkmcnt(0)')
        a.e('ds_write_b32 v9, v11')
        a.e('K1_ps%s:' % tag)
        a.e('ds_read_b32 v12, v10')
        a.e('s_waitcnt lgkmcnt(0)')
        a.e('v_cmp_eq_u32 vcc, 0, v12')
        a.e('s_cbranch_vccnz K1_ps%s' % tag)

    a.e('s_cmp_eq_u32 s6, 0')
    a.e('s_cbranch_scc0 K1_ex1')
    a.e('ds_write_b128 v3, %s', vr(KVA + 8, 4))
    a.e('ds_write_b128 v3, %s offset:1024', vr(KVA + 12, 4))
    pair_sync('a')
    a.e('ds_read_b128 %s, v5', vr(16, 4))
    a.e('ds_read_b128 %s, v5 offset:1024', vr(20, 4))
    a.e('ds_read_b32 v24, v6 offset:2048')
    a.e('s_waitcnt lgkmcnt(0)')
    for r in range(8):
        a.e('v_add_f32 v%d, v%d, v%d', 16 + r, 16 + r, KVA + r)
    a.e('v_add_f32 v24, v24, v%d', ZA)
    for r in range(8):
        a.e('buffer_atomic_add_f32 v%d, v7, %s, 0 offen offset:%d', 16 + r, sr(S_WS, 4), r * 256)
    a.e('s_mov_b32 exec_lo, -1\ns_mov_b32 exec_hi, 0')
    a.e('buffer_atomic_add_f32 v24, v8, %s, 0 offen', sr(S_WS, 4))
    a.e('s_mov_b64 exec, -1')
    a.e('s_branch K1_ex2')
    a.e('K1_ex1:')
    a.e('ds_write_b128 v3, %s', vr(KVA, 4))
    a.e('ds_write_b128 v3, %s offset:1024', vr(KVA + 4, 4))
    a.e('ds_write_b32 v4, v%d offset:2048', ZA)
    pair_sync('b')
    a.e('ds_read_b128 %s, v5', vr(16, 4))
    a.e('ds_read_b128 %s, v5 offset:1024', vr(20, 4))
    a.e('s_waitcnt lgkmcnt(0)')
    for r in range(8):
        a.e('v_add_f32 v%d, v%d, v%d', 16 + r, 16 + r, KVA + 8 + r)
    for r in range(8):
        a.e('buffer_atomic_add_f32 v%d, v7, %s, 0 offen offset:%d', 16 + r, sr(S_WS, 4), (8 + r) * 256)
    a.e('K1_ex2:')
    stamp(a, 4)
    stamp(a, 5)
    if STAMPS and not FUSE:
        a.e('s_waitcnt vmcnt(0)')
    stamp(a, 6); stamp(a, 7, True)
    stamp_flush(a, 0, S_WS, 8, 59)
    a.e('s_branch P2_entry' if FUSE else 's_endpgm')

    a.e('K1_side:')
    a.e('v_mov_b32 v56, %d', K1_LDS_KEY)
    a.e('ds_read_b128 v[60:63], v56')
    a.e('s_lshl_b32 s56, s2, 2')
    a.e('v_mov_b32 v56, s56')
    a.e('s_waitcnt vmcnt(0) lgkmcnt(0)')
    a.e('v_max_u32 v60, v60, v61')
    a.e('v_max_u32 v62, v62, v63')
    a.e('v_max_u32 v60, v60, v62')
    a.e('s_mov_b64 exec, 1')
    a.e('buffer_store_dword v60, v56, %s, 0 offen sc0 sc1' % sr(S_DBG, 4))
    a.e('s_mov_b64 exec, -1')
    a.e('s_movk_i32 s62, 99')
    a.e('s_branch K1_side_ret')

    a.e('K1_helper:')
    a.vm = []
    if 'k1prio' in EXP:
        a.e('s_setprio 1')
    VOA, VOB = 4, 5
    a.e('s_sub_u32 s6, s3, 4')
    a.e('s_lshl_b32 s7, s6, 10')
    a.e('v_lshrrev_b32 v6, 3, v2')
    a.e('s_lshl_b32 s56, s4, 7')
    a.e('s_lshl_b32 s57, s6, 3')
    a.e('s_add_u32 s56, s56, s57')
    a.e('v_add_u32 v7, s56, v6')
    a.e('v_lshlrev_b32 v7, 11, v7')
    a.e('v_lshrrev_b32 v8, 4, v2')
    a.e('s_and_b32 s56, s6, 1')
    a.e('s_lshl_b32 s56, s56, 2')
    a.e('v_add_u32 v9, s56, v8')
    a.e('v_and_b32 v10, 7, v2')
    a.e('v_xor_b32 v9, v9, v10')
    a.e('v_lshl_add_u32 v%d, v9, 4, v7', VOA)
    a.e('v_add_u32 v7, s57, v6')
    a.e('s_movk_i32 s56, 6144')
    a.e('v_mul_lo_u32 v7, v7, s56')
    a.e('v_and_b32 v9, 1, v8')
    a.e('v_lshlrev_b32 v9, 2, v9')
    a.e('v_xor_b32 v9, v9, v10')
    a.e('v_lshl_add_u32 v7, v9, 4, v7')
    a.e('s_lshl_b32 s56, s5, 7')
    a.e('v_add_u32 v%d, s56, v7', VOB)
    XR = 16
    WR = 32; GW = 40

    def dma(stage):
        slot = stage % 3
        if 'nodma' in EXP and stage >= 3:
            a.vm_issue('d%d' % stage, 's_nop 0')
            return
        if NFIX == 0:
            a.e('s_add_u32 s57, s67, %d', stage)
            a.e('s_and_b32 s57, s57, 15')
        elif stage < NFIX:
            a.e('s_mov_b32 s57, %d', stage)
        else:
            a.e('s_add_u32 s57, s67, %d', stage - NFIX)
            a.e('s_cmp_ge_u32 s57, %d', 16 - NFIX)
            a.e('s_cselect_b32 s59, %d, 0', 16 - NFIX)
            a.e('s_sub_u32 s57, s57, s59')
            a.e('s_add_u32 s57, s57, %d', NFIX)
        a.e('s_lshl_b32 s59, s57, 7')
        a.e('s_mul_i32 s57, s57, 393216')
        for aa in range(4):
            a.e('s_add_u32 m0, s7, %d', slot * K1_SLOT + aa * 4096)
            a.e('s_add_u32 s56, s59, %d', aa * 65536)
            a.vm_issue('d%d' % stage, 'buffer_load_dwordx4 v%d, %s, s56 offen' + (' nt' if 'ntA' in EXP else '') + ' lds', VOA, sr(S_X, 4))
        for ty in range(3):
            for b in range(2):
                a.e('s_add_u32 m0, s7, %d', slot * K1_SLOT + 16384 + ty * 8192 + b * 4096)
                a.e('s_add_u32 s56, s57, %d', b * 196608 + ty * 2048)
                a.vm_issue('d%d' % stage, 'buffer_load_dwordx4 v%d, %s, s56 offen' + (' nt' if 'ntB' in EXP else '') + ' lds', VOB, sr(S_W, 4))

    stamp(a, 2)
    if 'nod0' in EXP:
        dma(0)
    else:
        a.vm.append('d0')
    stamp(a, 3)
    a.e('s_barrier')
    dma(1)
    stamp(a, 4)
    a.vm_wait('d0')
    stamp(a, 5)
    a.e('s_barrier')
    dma(2)
    a.e('s_lshl_b32 s58, s2, 3')
    a.e('s_lshl_b32 s56, s6, 1')
    a.e('s_add_u32 s58, s58, s56')
    a.e('s_lshl_b32 s56, s58, 11')
    a.e('v_lshlrev_b32 v6, 4, v2')
    a.e('v_add_u32 v7, s56, v6')
    G0 = int(os.environ.get('G0', '6'))
    a.e('v_mov_b32 v13, v7')
    for q in range(2):
        a.vm_issue('wr', 'buffer_load_dwordx4 %s, v6, %s, 0 offen offset:%d', vr(WR + 4 * q, 4), sr(S_WR, 4), q * 1024)

    def gate_loads():
        for q in range(4):
            a.vm_issue('r', 'buffer_load_dwordx4 %s, v13, %s, 0 offen offset:%d', vr(XR + 4 * q, 4), sr(S_X, 4), q * 1024)
        for q in range(2):
            a.vm_issue('r', 'buffer_load_dwordx4 %s, v6, %s, 0 offen offset:%d', vr(GW + 4 * q, 4), sr(S_GW, 4), q * 1024)
    a.e('s_mul_i32 s64, s88, 9363')
    a.e('s_lshr_b32 s64, s64, 16')
    a.e('s_mul_i32 s56, s64, 7')
    a.e('s_sub_u32 s65, s88, s56')
    a.e('s_lshl_b32 s56, s64, 5')
    a.e('s_lshl_b32 s57, s6, 3')
    a.e('s_add_u32 s66, s56, s57')
    a.e('s_mul_i32 s56, s66, 7168')
    a.e('s_lshl_b32 s57, s65, 10')
    a.e('s_add_u32 s56, s56, s57')
    a.e('v_add_u32 v11, s56, v6')
    a.e('s_lshl_b32 s63, s2, 5')
    a.e('s_lshl_b32 s56, s6, 3')
    a.e('s_add_u32 s63, s63, s56')
    a.e('s_lshl_b32 s56, s63, 11')
    a.e('v_add_u32 v12, s56, v6')

    WF = 48
    GS = [82, 83]

    def g_row(row):
        a.e('v_mov_b32 v%d, 0', GS[row])
        for q in range(8):
            x = XR + 8 * row + q
            a.e('v_lshlrev_b32 v84, 16, v%d', x)
            a.e('v_and_b32 v85, 0xffff0000, v%d', x)
            a.e('v_mul_f32 v84, v84, v%d', WF + 2 * q)
            a.e('v_mul_f32 v85, v85, v%d', WF + 2 * q + 1)
            a.e('v_cvt_pk_bf16_f32 v84, v84, v85')
            a.e('v_and_b32 v85, 0xffff0000, v84')
            a.e('v_lshlrev_b32 v84, 16, v84')
            a.e('v_add_f32 v%d, v%d, v84', GS[row], GS[row])
            a.e('v_add_f32 v%d, v%d, v85', GS[row], GS[row])

    WGT = 96
    XS = 88
    ACC = 16
    RSUM = 64
    RROW = 192
    wl = [(m, j) for j in range(8) for m in range(2)]
    wsched = {12: wl[0:6], 13: wl[6:11], 14: wl[11:16]}
    if 'wmid' in EXP:
        wsched = {4 + k: wl[k:k + 1] for k in range(8)}
        wsched.update({12: wl[8:11], 13: wl[11:14], 14: wl[14:16]})
    if 'wmid2' in EXP:
        wsched = {8 + k: wl[k:k + 1] for k in range(4)}
        wsched.update({12: wl[4:8], 13: wl[8:12], 14: wl[12:16]})
    if 'wlate' in EXP:
        wsched = {12: wl[0:6], 13: wl[6:11], 14: wl[11:16]}
    XF = 160
    GACC = 168

    def gemv_rows(js):
        for j in js:
            for m in range(2):
                for q in range(4):
                    w = WGT + 32 * m + 4 * j + q
                    a.e('v_lshlrev_b32 v40, 16, v%d', w)
                    a.e('v_and_b32 v41, 0xffff0000, v%d', w)
                    a.e('v_fmac_f32 v%d, v40, v%d', GACC + 8 * m + 2 * q, XF + j)
                    a.e('v_fmac_f32 v%d, v41, v%d', GACC + 8 * m + 2 * q + 1, XF + j)

    def wload(lst):
        if 'now' in EXP:
            return
        for (m, j) in lst:
            a.e('s_mov_b32 s56, %d', j * 7168)
            a.vm_issue('w%d' % j, 'buffer_load_dwordx4 %s, v11, %s, s56 offen' + ('' if 'nont' in EXP else ' nt'), vr(WGT + 32 * m + 4 * j, 4), sr(S_WG if m == 0 else S_WU, 4))

    def pub_only(name):
        a.e('s_cmp_ge_u32 s2, %d', NPUB)
        a.e('s_cbranch_scc1 %s', name)

    for i in range(16):
        if i + 1 < 16:
            a.vm_wait('d%d' % (i + 1))
        if i == RL + 8:
            a.e('s_waitcnt lgkmcnt(0)')
        a.e('s_barrier')
        if i + 3 < 16:
            dma(i + 3)
        if RL <= i < RL + 4:
            pub_only('K1_nr%d' % i)
            for j in range(2 * (i - RL), 2 * (i - RL) + 2):
                a.e('s_mov_b32 s56, %d', j * 2048)
                for q in range(2):
                    a.vm_uncounted('buffer_load_dwordx4 %s, v12, %s, s56 offen offset:%d' % (vr(RROW + 8 * j + 4 * q, 4), sr(S_X, 4), q * 1024) + (' nt' if 'nrr' in EXP else ''))
            a.e('K1_nr%d:' % i)
        if i == G0:
            gate_loads()
        if i == G0 + 3:
            a.vm_wait('r')
            for q in range(8):
                a.e('v_lshlrev_b32 v%d, 16, v%d', WF + 2 * q, GW + q)
                a.e('v_and_b32 v%d, 0xffff0000, v%d', WF + 2 * q + 1, GW + q)
        if i == G0 + 4:
            g_row(0)
        if i == G0 + 5:
            g_row(1)
            wave_reduce(a, [82, 83], 'v_add_f32', 68)
            a.e('v_cvt_pk_bf16_f32 v84, v82, v83')
            a.e('v_lshlrev_b32 v82, 16, v84')
            a.e('v_and_b32 v83, 0xffff0000, v84')
            for r in (82, 83):
                a.e('v_mul_f32 v%d, s60, v%d', r, r)
            for r in (82, 83):
                a.e('v_exp_f32 v%d, -v%d', r, r)
            a.e('s_nop 0')
            for r in (82, 83):
                a.e('v_add_f32 v%d, 1.0, v%d', r, r)
            for r in (82, 83):
                a.e('v_rcp_f32 v%d, v%d', r, r)
            a.e('s_nop 0')
            a.e('v_cvt_pk_bf16_f32 v84, v82, v83')
            a.e('v_lshlrev_b32 v82, 16, v84')
            a.e('v_and_b32 v83, 0xffff0000, v84')
            a.e('s_lshl_b32 s56, s58, 2')
            a.e('s_add_u32 s56, s56, %d', WS_G)
            a.e('v_mov_b32 v84, s56')
            a.e('s_mov_b64 exec, 1')
            a.vm_issue('g', 'buffer_store_dwordx2 v[82:83], v84, %s, 0 offen%s' % (sr(S_WS, 4), WT))
            a.e('s_mov_b64 exec, -1')
        if RL + 3 <= i < RL + 7:
            pub_only('K1_nd%d' % i)
            js = range(2 * (i - 3 - RL), 2 * (i - 3 - RL) + 2)
            for j in js:
                a.e('v_mov_b32 v%d, 0', RSUM + j)
            for q in range(8):
                for j in js:
                    a.e('v_dot2_f32_bf16 v%d, v%d, v%d, v%d', RSUM + j, RROW + 8 * j + q, WR + q, RSUM + j)
            a.e('K1_nd%d:' % i)
        if i == RL + 7:
            pub_only('K1_nk')
            R = [RSUM + j for j in range(8)]
            a.e('v_and_b32 v84, 1, v2')
            a.e('v_cmp_eq_u32 s[68:69], 1, v84')
            a.e('v_and_b32 v84, 2, v2')
            a.e('v_cmp_eq_u32 s[70:71], 2, v84')
            a.e('s_nop 1')
            TA_ = 72
            for p in range(4):
                a.e('v_cndmask_b32 v%d, v%d, v%d, s[68:69]', TA_ + p, R[2 * p + 1], R[2 * p])
                a.e('v_cndmask_b32 v%d, v%d, v%d, s[68:69]', R[2 * p], R[2 * p], R[2 * p + 1])
            a.e('s_nop 0')
            for p in range(4):
                a.e('v_add_f32_dpp v%d, v%d, v%d quad_perm:[1,0,3,2] row_mask:0xf bank_mask:0xf', R[2 * p], TA_ + p, R[2 * p])
            for p in range(2):
                a.e('v_cndmask_b32 v%d, v%d, v%d, s[70:71]', TA_ + p, R[4 * p + 2], R[4 * p])
                a.e('v_cndmask_b32 v%d, v%d, v%d, s[70:71]', R[4 * p], R[4 * p], R[4 * p + 2])
            a.e('s_nop 1')
            for p in range(2):
                a.e('v_add_f32_dpp v%d, v%d, v%d quad_perm:[2,3,0,1] row_mask:0xf bank_mask:0xf', R[4 * p], TA_ + p, R[4 * p])
            RR = [R[0], R[4]]
            for pat in ('row_ror:4', 'row_ror:8'):
                a.e('s_nop 1')
                for r in RR:
                    a.e('v_add_f32_dpp v%d, v%d, v%d %s row_mask:0xf bank_mask:0xf', r, r, r, pat)
            for swp in ('v_permlane16_swap_b32', 'v_permlane32_swap_b32'):
                for k, r in enumerate(RR):
                    a.e('v_mov_b32 v%d, v%d', TA_ + k, r)
                a.e('s_nop 1')
                for k, r in enumerate(RR):
                    a.e('%s v%d, v%d', swp, r, TA_ + k)
                for k, r in enumerate(RR):
                    a.e('v_add_f32 v%d, v%d, v%d', r, r, TA_ + k)
            a.e('v_cvt_pk_bf16_f32 v84, v%d, v%d', RR[0], RR[1])
            a.e('v_lshlrev_b32 v%d, 16, v84', RR[0])
            a.e('v_and_b32 v%d, 0xffff0000, v84', RR[1])
            a.e('v_and_b32 v85, 3, v2')
            a.e('s_sub_u32 s56, %d, s63', 2047 + 0x8000)
            a.e('v_sub_u32 v85, s56, v85')
            for k, r in enumerate(RR):
                a.e('v_ashrrev_i32 v84, 31, v%d', r)
                a.e('v_or_b32 v84, 0x80000000, v84')
                a.e('v_xor_b32 v%d, v%d, v84', r, r)
                a.e('v_and_b32 v%d, 0xffff0000, v%d', r, r)
                a.e('v_or_b32 v%d, v85, v%d', r, r)
                a.e('v_subrev_u32 v85, 4, v85')
            a.e('v_max_u32 v%d, v%d, v%d', RSUM, RR[0], RR[1])
            for pat in ('quad_perm:[1,0,3,2]', 'quad_perm:[2,3,0,1]'):
                a.e('s_nop 1')
                a.e('v_max_u32_dpp v%d, v%d, v%d %s row_mask:0xf bank_mask:0xf', RSUM, RSUM, RSUM, pat)
            a.e('s_lshl_b32 s56, s6, 2')
            a.e('s_add_u32 s56, s56, %d', K1_LDS_KEY)
            a.e('v_mov_b32 v81, s56')
            a.e('ds_write_b32 v81, v%d', RSUM)
            a.e('K1_nk:')
        if i == PB:
            a.e('v_lshlrev_b32 v85, 2, v2')
            a.vm_issue('poll', 'buffer_load_dword v80, v85, %s, 0 offen sc0 sc1' % sr(S_DBG, 4))
        if i == PB + 1:
            a.vm_wait('poll')
            a.e('v_cmp_eq_u32 vcc, 0, v80')
            a.e('s_cmp_eq_u64 vcc, 0')
            a.e('s_cbranch_scc1 K1_pollok')
            a.e('s_mov_b32 s57, 0')
            a.e('K1_spin:')
            a.e('s_sleep 32')
            a.e('buffer_load_dword v80, v85, %s, 0 offen sc0 sc1' % sr(S_DBG, 4))
            a.e('s_waitcnt vmcnt(0)')
            a.e('v_cmp_eq_u32 vcc, 0, v80')
            a.e('s_add_u32 s57, s57, 1')
            a.e('s_cmp_eq_u64 vcc, 0')
            a.e('s_cbranch_scc1 K1_pollok')
            a.e('s_cmp_lt_u32 s57, 200000')
            a.e('s_cbranch_scc1 K1_spin')
            a.e('K1_pollok:')
            wave_reduce(a, [80], 'v_max_u32', 68)
            a.e('s_nop 0')
            a.e('v_readfirstlane_b32 s69, v80')
            a.e('s_nop 3')
            a.e('s_and_b32 s70, s69, 0x7ff')
            a.e('s_sub_u32 s70, 2047, s70')
            a.e('s_lshl_b32 s70, s70, 11')
            a.e('s_lshl_b32 s56, s66, 1')
            a.e('s_add_u32 s70, s70, s56')
            a.e('v_mov_b32 v85, s70')
            a.vm_issue('xs', 'buffer_load_dwordx4 %s, v85, %s, 0 offen' % (vr(XS, 4), sr(S_X, 4)))
            a.e('v_mov_b32 v85, %d', K1_LDS_KEY + 16)
            a.e('ds_write_b32 v85, v80')
            a.e('s_waitcnt lgkmcnt(0)')
        if i in wsched:
            wload(wsched[i])
    a.e('s_barrier')
    a.e('s_lshl_b32 s56, s6, 13')
    a.e('s_add_u32 s56, s56, %d', K1_QX)
    a.e('v_lshlrev_b32 v3, 4, v2')
    a.e('v_add_u32 v4, s56, v3')
    for q in range(8):
        a.e('ds_read_b128 %s, v4 offset:%d', vr(16 + 4 * q, 4), q * 1024)
    a.e('s_lshl_b32 s56, s4, 2')
    a.e('s_and_b32 s57, s6, 1')
    a.e('s_lshl_b32 s57, s57, 1')
    a.e('s_add_u32 s56, s56, s57')
    a.e('s_lshl_b32 s56, s56, 5')
    a.e('s_lshl_b32 s57, s5, 1')
    a.e('s_add_u32 s56, s56, s57')
    a.e('s_lshr_b32 s57, s6, 1')
    a.e('s_add_u32 s56, s56, s57')
    a.e('s_lshl_b32 s56, s56, 11')
    a.e('v_add_u32 v3, s56, v3')
    a.e('s_mov_b32 s56, 65536')
    a.e('s_waitcnt lgkmcnt(0)')
    for rb in range(2):
        o = 48 + 8 * rb
        phi16(a, 16 + 16 * rb, o, 64, 65, 66, 67, 60, 61, 68)
        so = '0' if rb == 0 else 's56'
        a.vm_issue('pqs', 'buffer_store_dwordx4 %s, v3, %s, %s offen' + WT, vr(o, 4), sr(S_WS, 4), so)
        a.vm_issue('pqs', 'buffer_store_dwordx4 %s, v3, %s, %s offen offset:1024' + WT, vr(o + 4, 4), sr(S_WS, 4), so)
    stamp(a, 6); stamp(a, 7, True)
    if STAMPS:
        stamp_flush(a, 0, S_WS, 8)
    if FUSE:
        a.e('s_branch P2_entry')
    a.e('K1_end:')
    a.e('s_endpgm')


K2_KVF = 0
K2_ZF = 65536
K2_RING = 67584
K2_SLOT = 16384
K2_NSLOT = 5
K2_YRED = K2_RING + K2_NSLOT * K2_SLOT
K2_LDS = K2_YRED + 8192
K2_TP = 272
K2_TK = 128 * K2_TP


def gen_k2(a):
    S_X, S_WO, S_WS, S_WD, S_OUT = 8, 12, 16, 24, 28
    a.vm = []
    if FUSE:
        a.e('P2_entry:')
    else:
        a.e('.globl k2_kernel\n.p2align 8\n.type k2_kernel,@function\nk2_kernel:')
        a.e('s_cmp_ge_u32 s2, 256')
        a.e('s_cbranch_scc1 K2_end')
    stamp(a, 0, True); stamp(a, 1)
    a.e('s_load_dwordx2 s[54:55], s[0:1], 88')
    a.e('s_load_dwordx2 s[40:41], s[0:1], 0')
    a.e('s_load_dwordx2 s[42:43], s[0:1], 16')
    a.e('s_load_dwordx2 s[44:45], s[0:1], 56')
    a.e('s_load_dwordx2 s[46:47], s[0:1], 72')
    a.e('v_lshrrev_b32 v1, 6, v0')
    a.e('v_and_b32 v2, 63, v0')
    a.e('s_and_b32 s56, s2, 7')
    a.e('v_readfirstlane_b32 s3, v1')
    a.e('s_lshr_b32 s57, s2, 3')
    a.e('s_and_b32 s4, s56, 3')
    a.e('s_lshl_b32 s4, s4, 2')
    a.e('s_and_b32 s58, s57, 3')
    a.e('s_add_u32 s4, s4, s58')
    a.e('s_lshr_b32 s5, s56, 2')
    a.e('s_lshl_b32 s5, s5, 3')
    a.e('s_lshr_b32 s58, s57, 2')
    a.e('s_add_u32 s5, s5, s58')
    a.e('s_and_b32 s6, s3, 3')
    a.e('s_lshr_b32 s7, s3, 2')
    a.e('s_mov_b32 s60, 0x%x', LOG2E)
    a.e('s_mov_b32 s61, 0x%x', EPS6)
    a.e('v_lshrrev_b32 v3, 4, v2')
    a.e('v_lshlrev_b32 v3, 11, v3')
    a.e('v_and_b32 v4, 15, v2')
    a.e('v_lshl_add_u32 v3, v4, 4, v3')
    a.e('s_lshl_b32 s56, s3, 13')
    a.e('s_add_u32 s56, s56, %d', WS_KV)
    a.e('v_add_u32 v3, s56, v3')
    a.e('s_lshl_b32 s56, s3, 4')
    a.e('v_add_u32 v5, s56, v4')
    a.e('v_lshrrev_b32 v6, 2, v5')
    a.e('v_lshlrev_b32 v6, 7, v6')
    a.e('v_and_b32 v7, 1, v5')
    a.e('v_lshl_add_u32 v6, v7, 6, v6')
    a.e('v_bfe_u32 v7, v5, 1, 1')
    a.e('v_lshl_add_u32 v6, v7, 4, v6')
    a.e('v_add_u32 v6, %d, v6', WS_Z)
    HT = 176
    WDT = 178
    a.e('s_lshr_b32 s62, s2, 2')
    a.e('s_and_b32 s63, s2, 3')
    a.e('s_mul_i32 s64, s62, 56')
    a.e('s_mul_i32 s56, s3, 7')
    a.e('s_add_u32 s64, s64, s56')
    a.e('v_min_u32 v7, 6, v2')
    a.e('v_lshlrev_b32 v7, 2, v7')
    a.e('s_lshl_b32 s56, s64, 2')
    a.e('s_add_u32 s56, s56, %d', WS_HU)
    a.e('v_add_u32 v7, s56, v7')
    a.e('s_lshl_b32 s56, s64, 11')
    a.e('s_lshl_b32 s57, s63, 9')
    a.e('s_add_u32 s56, s56, s57')
    a.e('v_lshlrev_b32 v18, 3, v2')
    a.e('v_add_u32 v18, s56, v18')
    a.e('v_mov_b32 v9, %d', K1_LDS_KEY + 16)
    a.e('ds_read_b32 v9, v9')
    a.e('s_waitcnt lgkmcnt(0)')
    a.e('v_readfirstlane_b32 s66, v9')
    a.e('s_nop 3')
    a.e('s_and_b32 s67, s66, 0x7ff')
    a.e('s_sub_u32 s67, 2047, s67')
    srd(a, S_WS, 54, WS_BYTES)
    srd(a, S_WD, 44, 7340032)
    WSR = sr(S_WS, 4)
    KVT = 64
    ZT = 192
    lstamp(a, 31, 16)
    srd(a, S_X, 40, 4194304)
    srd(a, S_WO, 42, 2097152)
    srd(a, S_OUT, 46, 4194304)
    VOW = 10
    a.e('v_lshrrev_b32 v11, 3, v2')
    a.e('s_lshl_b32 s56, s3, 3')
    a.e('v_add_u32 v11, s56, v11')
    a.e('v_lshlrev_b32 v11, 11, v11')
    a.e('v_bfe_u32 v12, v2, 4, 1')
    a.e('v_lshlrev_b32 v12, 2, v12')
    a.e('v_and_b32 v13, 7, v2')
    a.e('v_xor_b32 v12, v12, v13')
    a.e('v_lshl_add_u32 v11, v12, 4, v11')
    a.e('s_lshl_b32 s56, s5, 7')
    a.e('v_add_u32 v%d, s56, v11', VOW)
    a.e('s_lshl_b32 s65, s3, 10')
    VPQ = 11
    PQB = 128
    NPQ = 3
    a.e('s_lshl_b32 s56, s4, 2')
    a.e('s_add_u32 s56, s56, s6')
    a.e('s_lshl_b32 s56, s56, 16')
    a.e('s_lshl_b32 s57, s7, 12')
    a.e('s_add_u32 s56, s56, s57')
    a.e('v_lshlrev_b32 v%d, 4, v2', VPQ)
    a.e('v_add_u32 v%d, s56, v%d', VPQ, VPQ)

    def dma_g(st):
        slot = st % K2_NSLOT
        G = []
        for b in range(2):
            G.append(('d%d' % st, ['s_add_u32 m0, s65, %d' % (K2_RING + slot * K2_SLOT + b * 8192),
                                   's_mov_b32 s56, %d' % (st * 262144 + b * 131072)],
                      ('buffer_load_dwordx4 v%d, %s, s56 offen' + (' nt' if 'ntO' in EXP else '') + ' lds') % (VOW, sr(S_WO, 4))))
        return G

    def pq_g(st):
        b = PQB + 16 * (st % NPQ)
        return [('pq%d' % st, ['s_mov_b32 s56, %d' % (st * 8192)],
                 ('buffer_load_dwordx4 %s, v%d, %s, s56 offen offset:%d' % (vr(b + 4 * q, 4), VPQ, WSR, q * 1024)) + (' nt' if 'npq' in EXP else '')) for q in range(4)]

    def emit_g(G):
        for (tag, pre, ins) in G:
            for p in pre:
                a.e(p)
            a.vm_issue(tag, ins)

    VW0, VW1, VKV, VZ = 12, 13, 14, 15
    a.e('v_lshrrev_b32 v8, 5, v2')
    a.e('v_bfe_u32 v19, v2, 2, 2')
    a.e('v_lshl_add_u32 v20, v8, 2, v19')
    a.e('v_lshlrev_b32 v20, 7, v20')
    a.e('v_bfe_u32 v21, v2, 4, 1')
    a.e('v_lshl_add_u32 v20, v21, 5, v20')
    a.e('v_and_b32 v21, 3, v2')
    a.e('v_lshl_add_u32 v20, v21, 3, v20')
    a.e('s_lshl_b32 s56, s7, 13')
    a.e('s_add_u32 s56, s56, %d', K2_RING)
    a.e('v_add_u32 v20, s56, v20')
    a.e('v_lshrrev_b32 v19, 1, v19')
    a.e('v_lshl_add_u32 v%d, v19, 6, v20', VW0)
    a.e('v_xor_b32 v19, 1, v19')
    a.e('v_lshl_add_u32 v%d, v19, 6, v20', VW1)
    a.e('v_add_u32 v%d, %d, v%d', VW0 + 4, 3 * K2_SLOT, VW0)
    a.e('v_add_u32 v%d, %d, v%d', VW1 + 4, 3 * K2_SLOT, VW1)
    a.e('v_and_b32 v19, 3, v2')
    a.e('v_lshrrev_b32 v20, 2, v2')
    a.e('v_lshl_add_u32 v20, v19, 2, v20')
    a.e('v_and_b32 v20, 15, v20')
    a.e('v_lshl_add_u32 v20, v19, 4, v20')
    a.e('s_lshl_b32 s56, s7, 12')
    a.e('v_lshlrev_b32 v%d, 4, v20', VKV)
    a.e('v_add_u32 v%d, s56, v%d', VKV, VKV)
    a.e('s_lshl_b32 s56, s7, 7')
    a.e('s_add_u32 s56, s56, %d', K2_ZF)
    a.e('v_lshlrev_b32 v%d, 5, v8', VZ)
    a.e('v_add_u32 v%d, s56, v%d', VZ, VZ)
    a.e('v_lshlrev_b32 v19, 4, v2')
    a.e('v_add_u32 v19, %d, v19', K2_YRED)
    a.e('v_lshrrev_b32 v21, 4, v2')
    a.e('v_lshlrev_b32 v21, 10, v21')
    a.e('s_lshl_b32 s56, s3, 12')
    a.e('v_add_u32 v21, s56, v21')
    for cp in range(4):
        a.e('v_add_u32 v20, %d, v4', 4 * cp)
        a.e('v_and_b32 v20, 15, v20')
        a.e('v_lshl_add_u32 v%d, v20, 4, v21', 232 + cp)
    a.e('v_lshlrev_b32 v5, 4, v5')
    a.e('v_add_u32 v5, %d, v5', K2_ZF)
    def kv_conv(t):
        a.vm_wait('kv%d' % t)
        base = KVT + 32 * t
        for cp in range(4):
            for jj in range(4):
                a.e('v_cvt_pk_bf16_f32 v%d, v%d, v%d', 32 + 16 * t + 4 * cp + jj, base + 8 * jj + cp, base + 8 * jj + 4 + cp)
        for cp in range(4):
            a.e('ds_write_b128 v%d, %s offset:%d', 232 + cp, vr(32 + 16 * t + 4 * cp, 4), t * 32768 + cp * 256)
    lstamp(a, 31, 17)
    if FUSE:
        a.e('s_waitcnt vmcnt(0)')
        lstamp(a, 31, 26)
        a.e('s_barrier')
        lstamp(a, 31, 27)
        if STAMPS:
            a.e('s_memrealtime s[96:97]')
            a.e('s_waitcnt lgkmcnt(0)')
            a.e('v_writelane_b32 v31, s96, 28')
        S_WG, S_WU = 32, 36
        a.e('s_cmp_lg_u32 s3, 0')
        a.e('s_cbranch_scc1 P2_noarr')
        a.e('s_and_b32 s56, s2, %d', NSH - 1)
        a.e('s_lshl_b32 s56, s56, 7')
        a.e('s_add_u32 s56, s56, %d', WS_CNT)
        a.e('v_mov_b32 v24, s56')
        a.e('v_mov_b32 v25, 1')
        a.e('s_mov_b64 exec, 1')
        a.e('buffer_atomic_add v25, v24, %s, 0 offen', WSR)
        a.e('s_mov_b64 exec, -1')
        a.e('P2_noarr:')
        emit_g(dma_g(0)); emit_g(dma_g(1))
        if 'wdtouch' in EXP:
            a.e('v_lshrrev_b32 v24, 3, v2')
            a.e('v_min_u32 v24, 6, v24')
            a.e('v_lshlrev_b32 v24, 11, v24')
            a.e('v_and_b32 v25, 7, v2')
            a.e('v_lshl_add_u32 v24, v25, 6, v24')
            a.e('s_lshl_b32 s56, s64, 11')
            a.e('s_lshl_b32 s57, s63, 9')
            a.e('s_add_u32 s56, s56, s57')
            a.vm_issue('wdt', 'buffer_load_dword v29, v24, %s, s56 offen' + (' nt' if 'nwt' in EXP else ''), sr(S_WD, 4))
        for i in range(7):
            a.e('s_mov_b32 s56, %d', i * 2048)
            a.vm_issue('wd', 'buffer_load_dwordx2 %s, v18, %s, s56 offen nt', vr(WDT + 2 * i, 2), sr(S_WD, 4))
        a.e('s_cmp_lt_u32 s3, 4')
        a.e('s_cbranch_scc1 P2_nogemv')
        for q in range(4):
            a.e('v_lshlrev_b32 v%d, 16, v%d', 192 + 2 * q, 88 + q)
            a.e('v_and_b32 v%d, 0xffff0000, v%d', 193 + 2 * q, 88 + q)
        for r in range(16):
            a.e('v_mov_b32 v%d, 0', 200 + r)
        for j in range(8):
            for m in range(2):
                for q in range(4):
                    w = 96 + 32 * m + 4 * j + q
                    a.e('v_lshlrev_b32 v24, 16, v%d', w)
                    a.e('v_and_b32 v25, 0xffff0000, v%d', w)
                    a.e('v_fmac_f32 v%d, v24, v%d', 200 + 8 * m + 2 * q, 192 + j)
                    a.e('v_fmac_f32 v%d, v25, v%d', 200 + 8 * m + 2 * q + 1, 192 + j)
        a.e('s_and_b32 s56, s3, 3')
        a.e('s_lshl_b32 s56, s56, 12')
        a.e('v_lshlrev_b32 v24, 5, v2')
        a.e('v_add_u32 v24, s56, v24')
        a.e('ds_write_b128 v24, v[200:203]')
        a.e('ds_write_b128 v24, v[204:207] offset:16')
        a.e('ds_write_b128 v24, v[208:211] offset:2048')
        a.e('ds_write_b128 v24, v[212:215] offset:2064')
        a.e('s_waitcnt lgkmcnt(0)')
        a.e('P2_nogemv:')
        emit_g(dma_g(2)); emit_g(dma_g(3))
        a.e('v_and_b32 v27, %d, v2', NSH - 1)
        a.e('v_lshlrev_b32 v27, 7, v27')
        a.e('v_add_u32 v27, %d, v27', WS_CNT)
        a.e('s_barrier')
        a.e('s_cmp_lg_u32 s3, 0')
        a.e('s_cbranch_scc1 P2_np1')
        a.vm_uncounted('buffer_load_dword v26, v27, %s, 0 offen sc0 sc1' % WSR)
        a.e('P2_np1:')
        a.e('s_lshl_b32 s56, s3, 9')
        a.e('v_lshlrev_b32 v24, 2, v2')
        a.e('v_add_u32 v25, s56, v24')
        for w in range(4):
            for q in range(2):
                a.e('ds_read_b32 v%d, v25 offset:%d', 64 + 2 * w + q, w * 4096 + q * 256)
        a.e('s_mul_i32 s69, s88, 9363')
        a.e('s_lshr_b32 s69, s69, 16')
        a.e('s_mul_i32 s56, s69, 7')
        a.e('s_sub_u32 s70, s88, s56')
        a.e('s_lshr_b32 s56, s3, 2')
        a.e('s_mul_i32 s56, s56, 14336')
        a.e('s_lshl_b32 s57, s70, 11')
        a.e('s_add_u32 s56, s56, s57')
        a.e('s_and_b32 s57, s3, 3')
        a.e('s_lshl_b32 s57, s57, 9')
        a.e('s_add_u32 s56, s56, s57')
        a.e('s_add_u32 s56, s56, %d', WS_HU)
        a.e('s_waitcnt lgkmcnt(0)')
        for w in range(1, 4):
            for q in range(2):
                a.e('v_add_f32 v%d, v%d, v%d', 64 + q, 64 + q, 64 + 2 * w + q)
        a.e('s_cmp_ge_u32 s88, 224')
        a.e('s_cbranch_scc1 P2_nohu')
        a.vm_uncounted('buffer_atomic_add_f32 v64, v24, %s, s56 offen' % WSR)
        a.vm_uncounted('buffer_atomic_add_f32 v65, v24, %s, s56 offen offset:256' % WSR)
        a.e('s_nop 1')
        a.e('P2_nohu:')
        a.e('s_cmp_lg_u32 s3, 0')
        a.e('s_cbranch_scc1 P2_nopoll')
        a.e('s_mov_b32 s57, 0')
        a.e('s_waitcnt vmcnt(2)')
        a.e('s_cmp_lt_u32 s88, 224')
        a.e('s_cbranch_scc1 P2_chk')
        a.e('P2_spin:')
        a.e('s_waitcnt vmcnt(0)')
        a.e('P2_chk:')
        a.e('v_cmp_ne_u32 vcc, %d, v26', 256 // NSH)
        a.e('s_add_u32 s57, s57, 1')
        a.e('s_cmp_eq_u64 vcc, 0')
        a.e('s_cbranch_scc1 P2_nopoll')
        a.e('s_cmp_ge_u32 s57, 400000')
        a.e('s_cbranch_scc1 P2_nopoll')
        a.e('s_sleep %d', int(os.environ.get('PSLEEP', '4')))
        a.e('buffer_load_dword v26, v27, %s, 0 offen sc0 sc1', WSR)
        a.e('s_branch P2_spin')
        a.e('P2_nopoll:')
        a.e('s_barrier')
        if STAMPS:
            a.e('s_memrealtime s[96:97]')
            a.e('s_waitcnt lgkmcnt(0)')
            a.e('v_writelane_b32 v31, s96, 29')
            a.e('v_writelane_b32 v31, s57, 30')
    else:
        a.e('s_barrier')
    lstamp(a, 31, 18)
    a.e('s_mov_b32 s58, 65536')
    K1R = lambda j: (160 + 4 * j) if j < 4 else (208 + 4 * (j - 4))
    a.vm_issue('z', 'buffer_load_dwordx4 %s, v6, %s, 0 offen', vr(ZT, 4), WSR)
    a.vm_issue('z', 'buffer_load_dwordx4 %s, v6, %s, 0 offen offset:32', vr(ZT + 4, 4), WSR)
    for j in range(8):
        a.vm_issue('kv0', 'buffer_load_dwordx4 %s, v3, %s, 0 offen offset:%d', vr(KVT + 4 * j, 4), WSR, j * 256)
    lstamp(a, 31, 19)
    a.e('s_barrier')
    lstamp(a, 31, 20)
    emit_g(pq_g(0))
    a.e('v_add_u32 v20, s65, v19')
    stamp(a, 2)
    lstamp(a, 31, 21)
    a.e('s_barrier')
    lstamp(a, 31, 22)
    for j in range(8):
        a.vm_issue('kv1', 'buffer_load_dwordx4 %s, v3, %s, s58 offen offset:%d', vr(K1R(j), 4), WSR, j * 256)
    lstamp(a, 31, 23)
    DEFER = 'defer' in EXP
    if DEFER:
        vm_save = list(a.vm)
        a.e('s_cmp_ge_u32 s3, 4')
        a.e('s_cbranch_scc1 K2_dc0')
    kv_conv(0)
    if DEFER:
        for r in range(64, 96):
            a.e('v_mov_b32 v%d, 0', r)
        a.e('K2_dc0:')
        a.vm = vm_save
    a.vm_wait('z')
    a.e('v_cvt_pk_bf16_f32 v200, v%d, v%d', ZT, ZT + 1)
    a.e('v_cvt_pk_bf16_f32 v201, v%d, v%d', ZT + 2, ZT + 3)
    a.e('v_cvt_pk_bf16_f32 v202, v%d, v%d', ZT + 4, ZT + 5)
    a.e('v_cvt_pk_bf16_f32 v203, v%d, v%d', ZT + 6, ZT + 7)
    a.e('ds_write_b128 v5, v[200:203]')
    ACO = [64, 80]; ACN = [96, 112]
    KF = [32, 40]; ZFR = [48, 56]
    WOF = [192, 208]; OF = [224, 232]; DEN = [22, 23]; ACD = 240
    if not DEFER:
        for r in range(64, 96):
            a.e('v_mov_b32 v%d, 0', r)
    lstamp(a, 31, 24)

    def kv_conv0_late():
        R = lambda j: KVT + 4 * j
        a.e('s_cmp_lt_u32 s3, 4')
        a.e('s_cbranch_scc1 K2_dc1')
        for cp in range(4):
            for jj in range(4):
                a.e('v_cvt_pk_bf16_f32 v%d, v%d, v%d', R(2 * jj) + cp, R(2 * jj) + cp, R(2 * jj + 1) + cp)
        for cp in range(4):
            q = R(1) if cp % 2 == 0 else R(3)
            for jj in range(4):
                a.e('v_mov_b32 v%d, v%d', q + jj, R(2 * jj) + cp)
            a.e('ds_write_b128 v%d, %s offset:%d', 232 + cp, vr(q, 4), cp * 256)
        a.e('s_nop 1')
        for r in range(64, 96):
            a.e('v_mov_b32 v%d, 0', r)
        a.e('K2_dc1:')

    def kv_conv1():
        a.vm_wait('kv1')
        for cp in range(4):
            t = 24 + 4 * (cp & 1)
            t = [24, 96][0] if False else 24
            for jj in range(4):
                a.e('v_cvt_pk_bf16_f32 v%d, v%d, v%d', K1R(2 * jj) + cp, K1R(2 * jj) + cp, K1R(2 * jj + 1) + cp)
        for cp in range(4):
            for jj in range(4):
                a.e('v_mov_b32 v%d, v%d', K1R(1) + jj if cp % 2 == 0 else K1R(3) + jj, K1R(2 * jj) + cp)
            q = K1R(1) if cp % 2 == 0 else K1R(3)
            a.e('ds_write_b128 v%d, %s offset:%d', 232 + cp, vr(q, 4), 32768 + cp * 256)
    lstamp(a, 31, 25)
    a.e('s_waitcnt lgkmcnt(0)')
    stamp(a, 3)
    a.e('s_barrier')
    stamp(a, 4)
    a.e('s_cmp_lg_u32 s3, 0')
    a.e('s_cbranch_scc1 K2_nhd')
    a.e('s_and_b32 s56, s2, %d', NHS - 1)
    a.e('s_lshl_b32 s56, s56, 7')
    a.e('s_add_u32 s56, s56, %d', WS_HUDONE)
    a.e('v_mov_b32 v24, s56')
    a.e('v_mov_b32 v25, 1')
    a.e('s_mov_b64 exec, 1')
    a.vm_uncounted('buffer_atomic_add v25, v24, %s, 0 offen' % WSR)
    a.e('s_mov_b64 exec, -1')
    a.e('K2_nhd:')

    def kvz_reads(hd):
        st, u = hd >> 1, hd & 1
        b = hd & 1
        L = []
        for m in range(2):
            L.append('ds_read_b128 %s, v%d offset:%d' % (vr(KF[b] + 4 * m, 4), VKV, st * 8192 + u * 2048 + m * 1024))
        for m in range(2):
            L.append('ds_read_b128 %s, v%d offset:%d' % (vr(ZFR[b] + 4 * m, 4), VZ, st * 256 + u * 64 + m * 16))
        return L

    def wo_reads(hd):
        st, u = hd >> 1, hd & 1
        slot = st % K2_NSLOT
        L = []
        for cb in range(2):
            for m in range(2):
                for tt in range(2):
                    L.append('ds_read_b64_tr_b16 %s, v%d offset:%d' % (vr(WOF[hd & 1] + 8 * cb + 4 * m + 2 * tt, 2), VW0 + cb + (4 if slot >= 3 else 0),
                             (slot % 3) * K2_SLOT + u * 4096 + m * 2048 + tt * 1024))
        return L

    def pqreg(hd):
        return PQB + 16 * ((hd >> 1) % NPQ) + 8 * (hd & 1)

    def Nm(hd):
        b = hd & 1
        pq = pqreg(hd)
        return ['v_mfma_f32_32x32x16_bf16 %s, %s, %s, 0' % (vr(ACN[b], 16), vr(KF[b], 4), vr(pq, 4)),
                'v_mfma_f32_32x32x16_bf16 %s, %s, %s, %s' % (vr(ACN[b], 16), vr(KF[b] + 4, 4), vr(pq + 4, 4), vr(ACN[b], 16))]

    SMALLD = 'bigd' not in EXP

    def Dm(hd):
        b = hd & 1
        pq = pqreg(hd)
        if SMALLD:
            return ['v_mfma_f32_4x4x4_16b_bf16 %s, %s, %s, %s' % (vr(ACD, 4), vr(ZFR[b] + 2 * g, 2), vr(pq + 2 * g, 2), '0' if g == 0 else vr(ACD, 4))
                    for g in range(4)]
        return ['v_mfma_f32_32x32x16_bf16 %s, %s, %s, 0' % (vr(ACD, 16), vr(ZFR[b], 4), vr(pq, 4)),
                'v_mfma_f32_32x32x16_bf16 %s, %s, %s, %s' % (vr(ACD, 16), vr(ZFR[b] + 4, 4), vr(pq + 4, 4), vr(ACD, 16))]

    def den_fin(hd):
        d = DEN[hd & 1]
        L = []
        if SMALLD:
            L = ['v_permlane32_swap_b32 v%d, v%d' % (ACD, ACD + 1),
                 'v_add_f32 v%d, v%d, v%d' % (ACD, ACD, ACD + 1)]
        return L + ['v_cvt_pk_bf16_f32 v%d, v%d, v%d' % (d, ACD, ACD),
                    'v_lshlrev_b32 v%d, 16, v%d' % (d, d),
                    'v_add_f32 v%d, s61, v%d' % (d, d),
                    'v_cvt_pk_bf16_f32 v%d, v%d, v%d' % (d, d, d),
                    'v_lshlrev_b32 v%d, 16, v%d' % (d, d),
                    'v_rcp_f32 v%d, v%d' % (d, d)]

    def Vv(hd):
        b = hd & 1
        d = DEN[b]
        L = []
        for j in range(0, 8, 2):
            for k in range(4):
                r = ACN[b] + 2 * j + k
                L.append('v_mul_f32 v%d, v%d, v%d' % (r, r, d))
            L.append('v_cvt_pk_bf16_f32 v%d, v%d, v%d' % (OF[b] + j, ACN[b] + 2 * j, ACN[b] + 2 * j + 1))
            L.append('v_cvt_pk_bf16_f32 v%d, v%d, v%d' % (OF[b] + j + 1, ACN[b] + 2 * j + 2, ACN[b] + 2 * j + 3))
        return L

    def Mm(hd):
        b = hd & 1
        L = []
        for cb in range(2):
            for m in range(2):
                L.append('v_mfma_f32_32x32x16_bf16 %s, %s, %s, %s' % (vr(ACO[cb], 16), vr(WOF[b] + 8 * cb + 4 * m, 4), vr(OF[b] + 4 * m, 4), vr(ACO[cb], 16)))
        return L

    XO = 176
    YL = 160

    def moe_fill():
        G_, U_, T_ = HT, HT + 1, 28
        L = ['v_cvt_pk_bf16_f32 v%d, v%d, v%d' % (T_, G_, U_),
             'v_lshlrev_b32 v%d, 16, v%d' % (G_, T_),
             'v_and_b32 v%d, 0xffff0000, v%d' % (U_, T_),
             'v_mul_f32 v%d, s60, v%d' % (T_, G_),
             'v_exp_f32 v%d, -v%d' % (T_, T_),
             's_nop 0',
             'v_add_f32 v%d, 1.0, v%d' % (T_, T_),
             'v_rcp_f32 v%d, v%d' % (T_, T_),
             's_nop 0',
             'v_mul_f32 v%d, v%d, v%d' % (T_, T_, G_),
             'v_cvt_pk_bf16_f32 v%d, v%d, v%d' % (T_, T_, T_),
             'v_lshlrev_b32 v%d, 16, v%d' % (T_, T_),
             'v_mul_f32 v%d, v%d, v%d' % (T_, T_, U_),
             'v_cvt_pk_bf16_f32 v%d, v%d, v%d' % (T_, T_, T_),
             'v_lshlrev_b32 v%d, 16, v%d' % (T_, T_),
             's_nop 0']
        for i in range(7):
            L.append('v_readlane_b32 s%d, v%d, %d' % (32 + i, T_, i))
        for q in range(4):
            L.append('v_mov_b32 v%d, 0' % (24 + q))
        for i in range(7):
            for d in range(2):
                w = WDT + 2 * i + d
                L.append('v_lshlrev_b32 v28, 16, v%d' % w)
                L.append('v_and_b32 v29, 0xffff0000, v%d' % w)
                L.append('v_fmac_f32 v%d, s%d, v28' % (24 + 2 * d, 32 + i))
                L.append('v_fmac_f32 v%d, s%d, v29' % (24 + 2 * d + 1, 32 + i))
        L.append('ds_write_b128 v20, v[24:27]')
        return L

    def t2_fill(half):
        X = XO + 4 * half
        Gr = XO + 8 + half
        T = 128 + 8 * half
        om = 26 + half
        L = ['v_sub_f32 v%d, 1.0, v%d' % (om, Gr),
             'v_cvt_pk_bf16_f32 v%d, v%d, v%d' % (om, om, om),
             'v_lshlrev_b32 v%d, 16, v%d' % (om, om)]
        for q in range(4):
            x0, x1 = T + 2 * q, T + 2 * q + 1
            L += ['v_lshlrev_b32 v%d, 16, v%d' % (x0, X + q),
                  'v_and_b32 v%d, 0xffff0000, v%d' % (x1, X + q),
                  'v_mul_f32 v%d, v%d, v%d' % (x0, x0, om),
                  'v_mul_f32 v%d, v%d, v%d' % (x1, x1, om),
                  'v_cvt_pk_bf16_f32 v25, v%d, v%d' % (x0, x1),
                  'v_lshlrev_b32 v%d, 16, v25' % x0,
                  'v_and_b32 v%d, 0xffff0000, v25' % x1]
        return L
    MS = int(os.environ.get('MS', '3'))
    if 'k2prio' in EXP:
        a.e('s_cmp_lt_u32 s3, 4')
        a.e('s_cbranch_scc1 K2_np')
        a.e('s_setprio 1')
        a.e('K2_np:')
    for r in kvz_reads(0):
        a.e(r)
    pend = pq_g(1)
    for hd in range(-2, 16):
        if STAMPS and hd >= 0 and hd % 2 == 0:
            a.e('s_memtime s[96:97]')
            a.e('s_waitcnt lgkmcnt(0)')
            a.e('v_writelane_b32 v31, s96, %d', hd // 2)
        need_pq = hd + 2 < 16 and (hd + 2) % 2 == 0
        new_stage = 0 <= hd + 1 < 16 and (hd + 1) % 2 == 0
        if hd == 0:
            if DEFER:
                kv_conv0_late()
            kv_conv1()
            pend[0:0] = pq_g(2)
        ptags = set(g[0] for g in pend)
        if need_pq:
            assert 'pq%d' % ((hd + 2) >> 1) not in ptags
        if new_stage:
            assert 'd%d' % ((hd + 1) >> 1) not in ptags
        if hd == MS - 2:
            a.e('s_cmp_lg_u32 s3, 0')
            a.e('s_cbranch_scc1 K2_nh0')
            a.e('v_and_b32 v30, %d, v2', NHS - 1)
            a.e('v_lshlrev_b32 v30, 7, v30')
            a.e('v_add_u32 v30, %d, v30', WS_HUDONE)
            a.vm_uncounted('buffer_load_dword v%d, v30, %s, 0 offen sc0 sc1' % (HT, WSR))
            a.e('K2_nh0:')
            hud_mark = len(a.lines)
            vm_at_hud = a.issued
        if hd == MS:
            assert new_stage
            a.e('s_cmp_lg_u32 s3, 0')
            a.e('s_cbranch_scc1 K2_hok')
            a.e('s_waitcnt vmcnt(%d)', min(63, a.issued - vm_at_hud))
            a.e('s_mov_b32 s57, 0')
            a.e('K2_hchk:')
            a.e('v_cmp_gt_u32 vcc, %d, v%d', 256 // NHS, HT)
            a.e('s_cbranch_vccz K2_hok')
            a.e('s_add_u32 s57, s57, 1')
            a.e('s_cmp_ge_u32 s57, 400000')
            a.e('s_cbranch_scc1 K2_hok')
            a.e('s_sleep 4')
            a.e('buffer_load_dword v%d, v30, %s, 0 offen sc0 sc1' % (HT, WSR))
            a.e('s_waitcnt vmcnt(0)')
            a.e('s_branch K2_hchk')
            a.e('K2_hok:')
            pend += [('hu', [], 'buffer_load_dword v%d, v7, %s, 0 offen sc0 sc1' % (HT, WSR)),
                     ('hu', ['s_movk_i32 s56, 14336'], 'buffer_load_dword v%d, v7, %s, s56 offen sc0 sc1' % (HT + 1, WSR))]
            if 'wdtouch' in EXP:
                pend += [('hu', ['s_mov_b32 s56, %d' % (i * 2048)],
                          ('buffer_load_dwordx2 %s, v18, %s, s56 offen' % (vr(WDT + 2 * i, 2), sr(S_WD, 4))) + (' nt' if 'nwd' in EXP else '')) for i in range(7)]
        if hd == MS + 5:
            assert 'hu' not in ptags
            a.vm_wait('hu')
        if need_pq:
            a.vm_wait('pq%d' % ((hd + 2) >> 1), 'lgkmcnt(0)')
        elif new_stage:
            a.vm_wait('d%d' % ((hd + 1) >> 1), 'lgkmcnt(0)')
        else:
            a.e('s_waitcnt lgkmcnt(0)')
        if new_stage:
            st = (hd + 1) >> 1
            a.e('s_barrier')
            if st + 2 < 8 and st != 0:
                k_ = len([g for g in pend if g[0].startswith('pq')])
                pend[k_:k_] = pq_g(st + 2)
            if st + 4 < 8:
                pend += dma_g(st + 4)
            if hd == MS + 6:
                a.e('v_and_b32 v28, 31, v2')
                a.e('v_lshlrev_b32 v28, 2, v28')
                a.e('s_lshl_b32 s56, s3, 7')
                a.e('v_add_u32 v28, s56, v28')
                a.e('v_add_u32 v29, %d, v28', K2_YRED)
            if st == 6:
                a.e('v_lshrrev_b32 v3, 3, v0')
                a.e('s_lshl_b32 s56, s4, 7')
                a.e('v_add_u32 v3, s56, v3')
                a.e('v_lshlrev_b32 v4, 11, v3')
                a.e('v_and_b32 v5, 7, v0')
                a.e('v_lshl_add_u32 v4, v5, 4, v4')
                a.e('s_lshl_b32 s56, s5, 7')
                a.e('v_add_u32 v4, s56, v4')
                a.e('s_mov_b32 s59, 131072')
                a.e('v_lshlrev_b32 v5, 2, v3')
                a.e('v_add_u32 v5, %d, v5', WS_G)
                NX = ' nt' if 'nxo' in EXP else ''
                pend += [('xo', [], 'buffer_load_dwordx4 %s, v4, %s, 0 offen' % (vr(XO, 4), sr(S_X, 4)) + NX),
                         ('xo', [], 'buffer_load_dwordx4 %s, v4, %s, s59 offen' % (vr(XO + 4, 4), sr(S_X, 4)) + NX),
                         ('xo', [], 'buffer_load_dword v%d, v5, %s, 0 offen' % (XO + 8, WSR)),
                         ('xo', [], 'buffer_load_dword v%d, v5, %s, 0 offen offset:256' % (XO + 9, WSR))]
            if st == 7:
                a.e('s_lshr_b32 s56, s67, 7')
                a.e('s_cmp_lg_u32 s56, s4')
                a.e('s_cbranch_scc1 K2_nyl')
                a.e('s_lshl_b32 s56, s5, 8')
                a.e('s_lshl_b32 s57, s3, 15')
                a.e('s_add_u32 s56, s56, s57')
                a.e('s_add_u32 s56, s56, %d', WS_YP)
                a.e('v_lshlrev_b32 v6, 2, v2')
                a.e('v_add_u32 v6, s56, v6')
                for q in range(8):
                    a.e('s_mov_b32 s57, %d', q * 4096)
                    a.vm_uncounted('buffer_load_dword v%d, v6, %s, s57 offen sc0 sc1' % (YL + q, WSR))
                a.e('K2_nyl:')
        D_ = Dm(hd + 2) if hd + 2 < 16 else []
        N_ = Nm(hd + 2) if hd + 2 < 16 else []
        M_ = Mm(hd) if hd >= 0 else []
        Mf = D_[:1] + N_[:1] + M_[0:1] + D_[1:] + M_[2:3] + N_[1:] + M_[1:2] + M_[3:4]
        if SMALLD:
            if hd >= 0:
                Mf = D_[0:1] + N_[:1] + D_[1:2] + M_[0:1] + D_[2:3] + M_[2:3] + D_[3:4] + N_[1:] + M_[1:2] + M_[3:4]
            else:
                Mf = [D_[0], N_[0], 's_nop 0', D_[1], N_[1], 's_nop 0', D_[2], 's_nop 1', D_[3]]
        F = []
        if 0 <= hd + 1 < 16:
            F += wo_reads(hd + 1)
        if hd + 3 < 16:
            F += kvz_reads(hd + 3)
        if 0 <= hd + 1 < 16:
            F += Vv(hd + 1)
        if hd == MS + 5:
            F += moe_fill()
        if hd == 14:
            a.vm_wait('xo')
            F += t2_fill(0)
        if hd == 15:
            F += t2_fill(1)
        YR = [24, 25, 186, 187, 188, 189, 190, 191]
        ytail = []
        if hd == MS + 6:
            F = ['ds_read_b32 v%d, v29 offset:%d' % (YR[p], p * 1024) for p in range(8)] + F
        if hd == MS + 7:
            F += ['v_add_f32 v24, v24, v%d' % YR[p] for p in range(1, 8)]
            ytail = ['s_lshl_b32 s56, s62, 12', 's_lshl_b32 s57, s63, 10', 's_add_u32 s56, s56, s57', 's_add_u32 s56, s56, %d' % WS_YP,
                     's_mov_b32 exec_hi, 0', 'YPSTORE', 's_mov_b32 exec_hi, -1']
        tailF = []
        if hd + 2 < 16:
            if hd < 0:
                tailF = ['s_nop 7', 's_nop 7'] + den_fin(hd + 2)
            else:
                F += den_fin(hd + 2)
        if hd == -1:
            a.e('s_nop 7')
        n = len(Mf)
        per = -(-len(F) // n)
        for i in range(n):
            a.e(Mf[i])
            if pend and (i % 2 == 1 or n < 8 or len(pend) > 6):
                emit_g([pend.pop(0)])
            for f in F[i * per:(i + 1) * per]:
                a.e(f)
        for f in tailF:
            a.e(f)
        for f in ytail:
            if f == 'YPSTORE':
                a.vm_issue('yp', 'buffer_store_dword v24, v28, %s, s56 offen sc0 sc1' % WSR)
            else:
                a.e(f)
        if hd >= 14:
            a.e('s_nop 1')
    stamp(a, 5)
    a.e('s_nop 7')
    a.e('s_waitcnt lgkmcnt(0)')
    a.e('s_barrier')
    a.e('v_and_b32 v8, 31, v2')
    a.e('s_lshl_b32 s56, s6, 5')
    a.e('v_add_u32 v8, s56, v8')
    a.e('s_movk_i32 s56, %d', K2_TP)
    a.e('v_mul_lo_u32 v8, v8, s56')
    a.e('v_lshrrev_b32 v7, 5, v2')
    a.e('v_lshl_add_u32 v8, v7, 4, v8')
    a.e('s_mul_i32 s56, s7, %d', K2_TK)
    a.e('v_add_u32 v8, s56, v8')
    for cb in range(2):
        for q in range(4):
            a.e('ds_write_b128 v8, %s offset:%d', vr(ACO[cb] + 4 * q, 4), cb * 128 + q * 32)
    a.e('s_lshr_b32 s56, s67, 7')
    a.e('s_cmp_lg_u32 s56, s4')
    a.e('s_cbranch_scc1 K2_ny')
    a.e('s_mov_b32 s58, 0')
    a.e('K2_ychk:')
    a.e('s_waitcnt vmcnt(0)')
    a.e('v_cmp_eq_u32 vcc, -1, v%d', YL)
    for q in range(1, 8):
        a.e('v_cmp_eq_u32 s[68:69], -1, v%d', YL + q)
        a.e('s_or_b64 vcc, vcc, s[68:69]')
    a.e('s_cmp_eq_u64 vcc, 0')
    a.e('s_cbranch_scc1 K2_yok')
    a.e('s_add_u32 s58, s58, 1')
    a.e('s_cmp_ge_u32 s58, 100000')
    a.e('s_cbranch_scc1 K2_yok')
    a.e('s_sleep 4')
    for q in range(8):
        a.e('s_mov_b32 s57, %d', q * 4096)
        a.e('buffer_load_dword v%d, v6, %s, s57 offen sc0 sc1' % (YL + q, WSR))
    a.e('s_branch K2_ychk')
    a.e('K2_yok:')
    for q in range(1, 8):
        a.e('v_add_f32 v%d, v%d, v%d', YL, YL, YL + q)
    a.e('v_lshlrev_b32 v6, 2, v2')
    a.e('s_lshl_b32 s56, s3, 8')
    a.e('s_add_u32 s56, s56, %d', K2_YRED)
    a.e('v_add_u32 v6, s56, v6')
    a.e('ds_write_b32 v6, v%d', YL)
    a.e('K2_ny:')
    a.e('s_waitcnt lgkmcnt(0)')
    a.e('s_barrier')
    a.e('v_lshrrev_b32 v6, 3, v0')
    a.e('s_movk_i32 s56, %d', K2_TP)
    a.e('v_mul_lo_u32 v7, v6, s56')
    a.e('v_and_b32 v8, 7, v0')
    a.e('v_lshl_add_u32 v7, v8, 5, v7')
    for half in range(2):
        for k in range(2):
            for q in range(2):
                a.e('ds_read_b128 %s, v7 offset:%d', vr(64 + 16 * half + 8 * k + 4 * q, 4), half * 64 * K2_TP + k * K2_TK + q * 16)
    a.e('v_lshlrev_b32 v9, 5, v8')
    a.e('v_add_u32 v9, %d, v9', K2_YRED)
    a.e('s_waitcnt lgkmcnt(0)')
    for half in range(2):
        A = 64 + 16 * half
        X = XO + 4 * half
        Gr = XO + 8 + half
        T = 128 + 8 * half
        om = 26 + half
        a.e('v_add_u32 v5, %d, v3', 64 * half)
        a.e('v_cmp_eq_u32 vcc, s67, v5')
        a.e('s_and_saveexec_b64 s[70:71], vcc')
        lab = a.label('K2_nr')
        a.e('s_cbranch_execz %s', lab)
        for w in range(8):
            a.e('ds_read_b128 %s, v9 offset:%d', vr(192 + 8 * w, 4), w * 256)
            a.e('ds_read_b128 %s, v9 offset:%d', vr(192 + 8 * w + 4, 4), w * 256 + 16)
        a.e('s_and_b32 s56, s66, 0xffff0000')
        a.e('s_xor_b32 s57, s56, 0x80000000')
        a.e('s_not_b32 s58, s56')
        a.e('s_and_b32 s58, s58, 0xffff0000')
        a.e('s_cmp_ge_u32 s56, 0x80000000')
        a.e('s_cselect_b32 s56, s57, s58')
        a.e('v_mov_b32 v100, s56')
        a.e('v_mul_f32 v100, s60, v100')
        a.e('v_exp_f32 v100, -v100')
        a.e('s_nop 0')
        a.e('v_add_f32 v100, 1.0, v100')
        a.e('v_rcp_f32 v100, v100')
        a.e('s_nop 0')
        a.e('v_cvt_pk_bf16_f32 v100, v100, v100')
        a.e('v_lshlrev_b32 v100, 16, v100')
        a.e('s_waitcnt lgkmcnt(0)')
        for w in range(1, 8):
            for q in range(8):
                a.e('v_add_f32 v%d, v%d, v%d', 192 + q, 192 + q, 192 + 8 * w + q)
        for q in range(4):
            y0, y1 = 192 + 2 * q, 192 + 2 * q + 1
            x0, x1 = T + 2 * q, T + 2 * q + 1
            a.e('v_cvt_pk_bf16_f32 v116, v%d, v%d', y0, y1)
            a.e('v_lshlrev_b32 v%d, 16, v116', y0)
            a.e('v_and_b32 v%d, 0xffff0000, v116', y1)
            a.e('v_mul_f32 v%d, v%d, v100', y0, y0)
            a.e('v_mul_f32 v%d, v%d, v100', y1, y1)
            a.e('v_cvt_pk_bf16_f32 v116, v%d, v%d', y0, y1)
            a.e('v_lshlrev_b32 v%d, 16, v116', y0)
            a.e('v_and_b32 v%d, 0xffff0000, v116', y1)
            a.e('v_lshlrev_b32 v%d, 16, v%d', x0, X + q)
            a.e('v_and_b32 v%d, 0xffff0000, v%d', x1, X + q)
            a.e('v_add_f32 v%d, v%d, v%d', x0, x0, y0)
            a.e('v_add_f32 v%d, v%d, v%d', x1, x1, y1)
            a.e('v_cvt_pk_bf16_f32 v116, v%d, v%d', x0, x1)
            a.e('v_lshlrev_b32 v%d, 16, v116', x0)
            a.e('v_and_b32 v%d, 0xffff0000, v116', x1)
            a.e('v_mul_f32 v%d, v%d, v%d', x0, x0, om)
            a.e('v_mul_f32 v%d, v%d, v%d', x1, x1, om)
            a.e('v_cvt_pk_bf16_f32 v116, v%d, v%d', x0, x1)
            a.e('v_lshlrev_b32 v%d, 16, v116', x0)
            a.e('v_and_b32 v%d, 0xffff0000, v116', x1)
        a.e('%s:', lab)
        a.e('s_mov_b64 exec, s[70:71]')
        O = 120 + 4 * half
        for q in range(4):
            a0, a1 = A + 2 * q, A + 2 * q + 1
            a.e('v_add_f32 v%d, v%d, v%d', a0, a0, a0 + 8)
            a.e('v_add_f32 v%d, v%d, v%d', a1, a1, a1 + 8)
            a.e('v_cvt_pk_bf16_f32 v116, v%d, v%d', a0, a1)
            a.e('v_lshlrev_b32 v%d, 16, v116', a0)
            a.e('v_and_b32 v%d, 0xffff0000, v116', a1)
            a.e('v_mul_f32 v%d, v%d, v%d', a0, a0, Gr)
            a.e('v_mul_f32 v%d, v%d, v%d', a1, a1, Gr)
            a.e('v_cvt_pk_bf16_f32 v116, v%d, v%d', a0, a1)
            a.e('v_lshlrev_b32 v%d, 16, v116', a0)
            a.e('v_and_b32 v%d, 0xffff0000, v116', a1)
            a.e('v_add_f32 v%d, v%d, v%d', a0, a0, T + 2 * q)
            a.e('v_add_f32 v%d, v%d, v%d', a1, a1, T + 2 * q + 1)
            a.e('v_cvt_pk_bf16_f32 v%d, v%d, v%d', O + q, a0, a1)
        a.e('buffer_store_dwordx4 %s, v4, %s, %s offen' + ' nt', vr(O, 4), sr(S_OUT, 4), '0' if half == 0 else 's59')
    if STAMPS:
        a.e('s_waitcnt vmcnt(0)')
    stamp(a, 6); stamp(a, 7, True)
    if STAMPS:
        a.e('s_cmp_lg_u32 s2, 100')
        a.e('s_cbranch_scc1 K2_nodbg')
        a.e('s_cmp_lg_u32 s3, 0')
        a.e('s_cbranch_scc1 K2_nodbg')
        a.e('s_load_dwordx2 s[52:53], s[0:1], 80')
        a.e('v_lshlrev_b32 v1, 3, v2')
        a.e('v_add_u32 v1, %d, v1', WS_ST + 100 * 8 * 128)
        a.e('buffer_load_dword v5, v1, %s, 0 offen', sr(S_WS, 4))
        a.e('s_waitcnt vmcnt(0) lgkmcnt(0)')
        srd(a, 20, 52, 256)
        for i in range(8):
            a.e('v_writelane_b32 v5, s%d, %d', 72 + 2 * i, 8 + i)
        a.e('v_lshlrev_b32 v1, 2, v2')
        a.e('buffer_store_dword v5, v1, s[20:23], 0 offen')
        a.e('K2_nodbg:')
    stamp_flush(a, 1, S_WS, 8, 31)
    a.e('K2_end:')
    a.e('s_endpgm')


def main():
    hdr = open(os.path.join(os.path.dirname(os.path.abspath(__file__)), '..', NAME + '.s.ref')).read().split('; Override launch')[0]
    a = Asm()
    launches = ['; @launch kernel=k1_kernel grid=(256,1,1) block=(512,1,1) lds=%d' % K1_LDS,
                '; @launch kernel=k2_kernel grid=(256,1,1) block=(512,1,1) lds=%d' % K2_LDS]
    if FUSE:
        launches = ['; @launch grid=(256,1,1) block=(512,1,1) lds=%d' % max(K1_LDS, K2_LDS)]
    a.e('.amdgcn_target "amdgcn-amd-amdhsa--gfx950"')
    a.e('.text')
    gen_k1(a)
    gen_k2(a)
    a.e('CODE_END:')
    kds = kd(NAME + '_kernel', 256) if FUSE else kd('k1_kernel', 256) + kd('k2_kernel', 256)
    out = hdr + '\n'.join(launches) + '\n' + a.text() + '.section .rodata,"a"\n' + kds
    path = sys.argv[1] if len(sys.argv) > 1 else os.path.join(os.path.dirname(os.path.abspath(__file__)), '..', NAME + '.s')
    open(path, 'w').write(out)


if __name__ == '__main__':
    main()
```

```python
import sys, os
sys.path.insert(0, os.path.dirname(os.path.abspath(__file__)))
from asmlib import *

NAME = 'gated_mix__linear_attn_block__moe_arch_mod__prompt'
E = lambda k, d: int(os.environ.get(k, str(d)))
EXP = os.environ.get('EXP', '')
STAMPS = E('STAMPS', 0)

WS_O = 0
WS_KV = 4 << 20
WS_Z = WS_KV + (1 << 20)
WS_HU = WS_Z + 65536
WS_YP = WS_HU + 64 * 2048
WS_G = WS_YP + 16 * 64 * 256
WS_KEY = WS_G + 32768
WS_ST = 16 << 20
WS_BYTES = 268435456
WT = ' sc0 sc1'
RD = ' sc1'

SLOT = 40960
BQ, BK, BV = 16384, 24576, 32768
S3 = 3 * SLOT
MISC = S3 + 32768
L_FLG = MISC
L_HS = MISC + 64
L_YS = MISC + 64 + 1280
L_KVF = MISC + 4096 - 256
L_ZF = L_KVF
L_KF = L_KVF + 256
LDS = 163840
assert L_YS + 2304 <= L_KVF and L_KF + 4096 <= LDS
L_KST = 0
L_QH = BK
L_VST = SLOT + BK

S_X, S_W, S_WS, S_WO, S_WV, S_MW, S_WD, S_OUT, S_DBG = 8, 12, 16, 20, 24, 28, 32, 36, 40
WSR = sr(S_WS, 4)
sW, sRT, sCT, sRT2, sCT2, sHW, sHALF, sL2E, sEPS = 3, 4, 5, 6, 7, 44, 45, 46, 47
sKEY, sIDX, sPEND, sSLO, sSHI, sCG, sKQ = 74, 75, 76, 77, 78, 79, 73
LOG2E = 0x3fb8aa3b
EPS6 = 0x358637bd
SPIN = E("SPIN", 20000)

a = Asm()
nstamp = [0]


def stamp(idx, lvl=1):
    if STAMPS == lvl or (STAMPS and idx == 0):
        a.e('s_memrealtime s[%d:%d]', 80 + 2 * idx, 81 + 2 * idx)


def nop(n):
    while n > 0:
        k = min(n, 16)
        a.e('s_nop %d', k - 1)
        n -= k


def srd2(d, nbytes):
    a.e('s_mov_b32 s%d, 0x%x', d + 2, nbytes)
    a.e('s_mov_b32 s%d, 0x00020000', d + 3)


def mfma(d, x, y, c=None):
    return 'v_mfma_f32_16x16x32_bf16 %s, %s, %s, %s' % (vr(d, 4), vr(x, 4), vr(y, 4), vr(d, 4) if c is None else c)


def phi_packed(src, dst, n, t, mn=None):
    L = []
    for j in range(n):
        t0 = t + 4 * (j & 1)
        e0 = t0 + 2
        L += ['v_lshlrev_b32 v%d, 16, v%d' % (t0, src + j),
              'v_and_b32 v%d, 0xffff0000, v%d' % (t0 + 1, src + j),
              'v_pk_mul_f32 %s, %s, s[70:71]' % (vr(e0, 2), vr(t0, 2)),
              'v_pk_add_f32 %s, %s, 1.0 op_sel_hi:[1,0]' % (vr(t0, 2), vr(t0, 2)),
              'v_exp_f32 v%d, v%d clamp' % (e0, e0),
              'v_exp_f32 v%d, v%d clamp' % (e0 + 1, e0 + 1),
              'v_max_f32 v%d, v%d, v%d' % (t0, t0, e0),
              'v_max_f32 v%d, v%d, v%d' % (t0 + 1, t0 + 1, e0 + 1)]
        if mn is not None:
            L.append(('v_min_f32 v%d, v%d, v%d' % (mn, t0, t0 + 1)) if j == 0 else ('v_min3_f32 v%d, v%d, v%d, v%d' % (mn, t0, t0 + 1, mn)))
        L.append('v_cvt_pk_bf16_f32 v%d, v%d, v%d' % (dst + j, t0, t0 + 1))
    out = []
    per = len(L) // n
    for j in range(0, n, 2):
        A, B = L[j * per:(j + 1) * per], L[(j + 1) * per:(j + 2) * per]
        out += A[:6] + B[:6] + A[6:] + B[6:]
    return out


def phi_eps(dst, n, t):
    for j in range(n):
        a.e('v_lshlrev_b32 v%d, 16, v%d', t, dst + j)
        a.e('v_and_b32 v%d, 0xffff0000, v%d', t + 1, dst + j)
        a.e('v_add_f32 v%d, s%d, v%d', t, sEPS, t)
        a.e('v_add_f32 v%d, s%d, v%d', t + 1, sEPS, t + 1)
        a.e('v_cvt_pk_bf16_f32 v%d, v%d, v%d', dst + j, t, t + 1)


def emit(L):
    for x in L:
        a.e(x)


def wave_reduce(regs, op, stmp):
    pats = ['quad_perm:[1,0,3,2]', 'quad_perm:[2,3,0,1]', 'row_half_mirror', 'row_mirror']
    nop(2)
    for p in pats:
        if len(regs) < 3:
            nop(2)
        for r in regs:
            a.e('%s_dpp v%d, v%d, v%d %s row_mask:0xf bank_mask:0xf', op, r, r, r, p)
    nop(2)
    for r in regs:
        for q in range(4):
            a.e('v_readlane_b32 s%d, v%d, %d', stmp + q, r, 16 * q)
        nop(2)
        a.e('v_mov_b32 v%d, s%d', r, stmp)
        for q in range(1, 4):
            a.e('%s v%d, s%d, v%d', op, r, stmp + q, r)


def red8(acc, t, vlane):
    a.e('v_and_b32 v%d, 8, v%d', t, vlane)
    a.e('v_cmp_eq_u32 vcc, 0, v%d', t)
    nop(2)
    for j in range(4):
        a.e('v_cndmask_b32 v%d, v%d, v%d, vcc', t + j, acc + j, acc + 4 + j)
        a.e('v_cndmask_b32 v%d, v%d, v%d, vcc', acc + j, acc + 4 + j, acc + j)
    nop(1)
    for j in range(4):
        a.e('v_add_f32_dpp v%d, v%d, v%d row_ror:8 row_mask:0xf bank_mask:0xf', acc + j, t + j, acc + j)
    nop(2)
    for j in range(2):
        a.e('v_permlane16_swap_b32 v%d, v%d', acc + j, acc + 2 + j)
    for j in range(2):
        a.e('v_add_f32 v%d, v%d, v%d', acc + j, acc + j, acc + 2 + j)
    nop(2)
    a.e('v_permlane32_swap_b32 v%d, v%d', acc, acc + 1)
    a.e('v_add_f32 v%d, v%d, v%d', acc, acc, acc + 1)


def red8_col(dst, t, vlane):
    a.e('v_and_b32 v%d, 7, v%d', dst, vlane)
    a.e('v_lshlrev_b32 v%d, 5, v%d', dst, dst)
    a.e('v_bfe_u32 v%d, v%d, 3, 1', t, vlane)
    a.e('v_lshl_add_u32 v%d, v%d, 4, v%d', dst, t, dst)
    a.e('v_bfe_u32 v%d, v%d, 4, 1', t, vlane)
    a.e('v_lshl_add_u32 v%d, v%d, 3, v%d', dst, t, dst)
    a.e('v_lshrrev_b32 v%d, 5, v%d', t, vlane)
    a.e('v_lshl_add_u32 v%d, v%d, 2, v%d', dst, t, dst)


def gemv_rows(w, xp, n, acc, t, dot):
    x = xp + (n >> 1)
    L = []
    if dot:
        L.append(('v_and_b32 v%d, 0xffff, v%d' if n % 2 == 0 else 'v_lshrrev_b32 v%d, 16, v%d') % (t, x))
        L.append(('v_lshlrev_b32 v%d, 16, v%d' if n % 2 == 0 else 'v_and_b32 v%d, 0xffff0000, v%d') % (t + 1, x))
        for q in range(4):
            L.append('v_dot2_f32_bf16 v%d, v%d, v%d, v%d' % (acc + 2 * q, w + q, t, acc + 2 * q))
            L.append('v_dot2_f32_bf16 v%d, v%d, v%d, v%d' % (acc + 2 * q + 1, w + q, t + 1, acc + 2 * q + 1))
    else:
        L.append(('v_lshlrev_b32 v%d, 16, v%d' if n % 2 == 0 else 'v_and_b32 v%d, 0xffff0000, v%d') % (t, x))
        for q in range(4):
            L += ['v_lshlrev_b32 v%d, 16, v%d' % (t + 1, w + q), 'v_and_b32 v%d, 0xffff0000, v%d' % (t + 2, w + q),
                  'v_fmac_f32 v%d, v%d, v%d' % (acc + 2 * q, t + 1, t), 'v_fmac_f32 v%d, v%d, v%d' % (acc + 2 * q + 1, t + 2, t)]
    return L


kn = NAME + '_kernel'
a.e('.amdgcn_target "amdgcn-amd-amdhsa--gfx950"\n.text')
a.e('.globl %s\n.p2align 8\n.type %s,@function\n%s:' % (kn, kn, kn))
a.e('s_cmp_ge_u32 s2, 256')
a.e('s_cbranch_scc1 END')
stamp(0)
a.e('s_load_dwordx2 s[8:9], s[0:1], 0')
a.e('s_load_dwordx2 s[12:13], s[0:1], 8')
a.e('s_load_dwordx8 s[48:55], s[0:1], 32')
a.e('s_load_dwordx8 s[56:63], s[0:1], 64')
a.e('s_load_dwordx2 s[20:21], s[0:1], 16')
a.e('s_getpc_b64 s[64:65]')
a.e('PC0:')
if 'nocode' not in EXP:
    a.e('s_and_b32 s66, s2, 0xf8')
    a.e('v_and_b32 v1, 15, v0')
    a.e('v_lshl_add_u32 v1, s66, 1, v1')
    a.e('v_lshlrev_b32 v1, 6, v1')
    a.e('v_min_u32 v1, CODE_END-PC0-4, v1')
    a.vm_issue('code', 'global_load_dword v255, v1, s[64:65]')
a.e('v_lshrrev_b32 v1, 6, v0')
a.e('v_and_b32 v2, 63, v0')
a.e('s_and_b32 s64, s2, 7')
a.e('v_readfirstlane_b32 s3, v1')
a.e('s_lshr_b32 s65, s2, 3')
a.e('s_and_b32 s4, s64, 1')
a.e('s_lshl_b32 s4, s4, 3')
a.e('s_and_b32 s66, s65, 7')
a.e('s_add_u32 s4, s4, s66')
a.e('s_lshr_b32 s5, s64, 1')
a.e('s_lshl_b32 s5, s5, 2')
a.e('s_lshr_b32 s66, s65, 3')
a.e('s_add_u32 s5, s5, s66')
a.e('s_and_b32 s44, s3, 3')
a.e('s_lshr_b32 s45, s3, 2')
VOA, VOB = 4, 5
a.e('v_lshrrev_b32 v6, 3, v2')
a.e('s_lshl_b32 s66, s44, 3')
a.e('v_add_u32 v6, s66, v6')
a.e('s_lshl_b32 s66, s4, 7')
a.e('v_add_u32 v7, s66, v6')
a.e('v_lshlrev_b32 v7, 11, v7')
a.e('v_lshrrev_b32 v8, 4, v2')
a.e('s_and_b32 s67, s44, 1')
a.e('s_lshl_b32 s66, s67, 2')
a.e('v_add_u32 v9, s66, v8')
a.e('v_and_b32 v10, 7, v2')
a.e('v_xor_b32 v9, v9, v10')
a.e('v_lshl_add_u32 v%d, v9, 4, v7', VOA)
a.e('v_mul_u32_u24 v6, 6144, v6')
a.e('v_and_b32 v9, 1, v8')
a.e('v_lshlrev_b32 v9, 2, v9')
a.e('v_xor_b32 v9, v9, v10')
a.e('s_lshl_b32 s66, s67, 1')
a.e('v_xor_b32 v9, s66, v9')
a.e('v_lshl_add_u32 v6, v9, 4, v6')
a.e('s_lshl_b32 s66, s5, 7')
a.e('v_add_u32 v%d, s66, v6', VOB)
srd2(S_X, 4194304)
srd2(S_W, 6291456)
a.e('s_lshl_b32 s72, s44, 10')
a.e('s_lshl_b32 s66, s45, 13')
a.e('s_add_u32 s68, s72, s66')
a.e('s_lshl_b32 s66, s45, 12')
a.e('s_add_u32 s69, s72, s66')
a.e('s_lshl_b32 s70, s45, 17')
a.e('s_mul_i32 s71, s45, 196608')
a.e('s_waitcnt lgkmcnt(0)')
for st in range(2):
    for ty in (1, 2, 0):
        a.e('s_add_u32 m0, s69, %d', st * SLOT + BQ + ty * 8192)
        a.e('s_add_u32 s66, s71, %d', st * 393216 + ty * 2048)
        a.vm_issue('d%d' % st, 'buffer_load_dwordx4 v%d, %s, s66 offen lds', VOB, sr(S_W, 4))
    for q in range(2):
        a.e('s_add_u32 m0, s68, %d', st * SLOT + q * 4096)
        a.e('s_add_u32 s66, s70, %d', st * 128 + q * 65536)
        a.vm_issue('d%d' % st, 'buffer_load_dwordx4 v%d, %s, s66 offen lds', VOA, sr(S_X, 4))
    if st == 0:
        a.e('s_barrier')
for d, b in ((S_WS, 62), (S_WD, 54), (S_OUT, 58), (S_DBG, 60)):
    a.e('s_mov_b32 s%d, s%d', d, b)
    a.e('s_mov_b32 s%d, s%d', d + 1, b + 1)
srd2(S_WS, WS_BYTES); srd2(S_WD, 7340032); srd2(S_OUT, 4194304); srd2(S_DBG, 256); srd2(S_WO, 2097152)
a.e('s_bitcmp0_b32 s44, 0')
a.e('s_cselect_b32 s24, s48, s56')
a.e('s_cselect_b32 s25, s49, s57')
srd2(S_WV, 2048)
a.e('s_bitcmp0_b32 s44, 0')
a.e('s_cselect_b32 s28, s50, s52')
a.e('s_cselect_b32 s29, s51, s53')
srd2(S_MW, 7340032)
a.e('s_cmp_ge_u32 s2, 224')
a.e('s_cselect_b32 s30, 0, s30')
a.e('s_cselect_b32 s34, 0, s34')
a.e('s_lshr_b32 s%d, s2, 2', sCG)
a.e('s_and_b32 s%d, s2, 3', sKQ)
a.e('s_and_b32 s6, s64, 3')
a.e('s_lshl_b32 s6, s6, 2')
a.e('s_and_b32 s66, s65, 3')
a.e('s_add_u32 s6, s6, s66')
a.e('s_lshr_b32 s7, s64, 2')
a.e('s_lshl_b32 s7, s7, 3')
a.e('s_lshr_b32 s66, s65, 2')
a.e('s_add_u32 s7, s7, s66')
a.e('s_mov_b32 s%d, 0x%x', sL2E, LOG2E)
a.e('s_mov_b32 s%d, 0x%x', sEPS, EPS6)
a.e('s_cmp_ge_u32 s3, 4')
a.e('s_cbranch_scc1 HELP')
vm_entry = list(a.vm)

VAB, VBB, VA, VB = 4, 6, 8, 10
FR = [16, 56]
QA, KA, VV = 96, 128, 160
a.e('s_and_b32 s48, s3, 1')
a.e('s_lshr_b32 s49, s3, 1')
a.e('v_and_b32 v3, 15, v2')
a.e('s_lshl_b32 s66, s48, 6')
a.e('v_add_u32 v3, s66, v3')
a.e('v_lshlrev_b32 v3, 7, v3')
a.e('v_bfe_u32 v9, v2, 1, 3')
a.e('v_lshrrev_b32 v15, 4, v2')
a.e('v_xor_b32 v9, v9, v15')
for u in range(2):
    a.e('v_xor_b32 v12, %d, v9', 4 * u)
    a.e('v_lshl_add_u32 v%d, v12, 4, v3', VAB + u)
a.e('v_bfe_u32 v12, v2, 2, 2')
a.e('v_lshl_add_u32 v13, v15, 3, v12')
a.e('v_lshlrev_b32 v13, 7, v13')
a.e('v_lshrrev_b32 v12, 1, v12')
a.e('v_xor_b32 v12, s49, v12')
a.e('v_lshl_add_u32 v13, v12, 6, v13')
a.e('v_and_b32 v12, 3, v2')
a.e('v_lshl_add_u32 v13, v12, 3, v13')
a.e('v_add_u32 v13, %d, v13', BQ)
a.e('v_and_b32 v12, 1, v15')
for nb in range(2):
    a.e('v_xor_b32 v14, %d, v12', nb)
    a.e('v_lshl_add_u32 v%d, v14, 5, v13', VBB + nb)
for q in range(4):
    a.e('v_mov_b32 v%d, v%d', VA + q, VAB + q)
for r in range(96, 192):
    a.e('v_mov_b32 v%d, 0', r)
a.e('v_lshlrev_b32 v12, 2, v2')
a.e('v_and_b32 v12, 63, v12')
a.e('v_add_u32 v12, %d, v12', L_FLG)
a.e('ds_write_b32 v12, v96')


def accreg(i, j):
    return (QA, KA, VV)[j >> 1] + 8 * i + 4 * (j & 1)


def rdA(dst, va, i, off=0):
    return 'ds_read_b128 %s, v%d offset:%d' % (vr(dst, 4), va, off + i * 2048)


def rdB(dst, vb, j, u, tt, off=0):
    return 'ds_read_b64_tr_b16 %s, v%d offset:%d' % (vr(dst + 2 * tt, 2), vb + (j & 1), off + (j >> 1) * 8192 + u * 4096 + tt * 512)


def full_reads(u, buf):
    f = FR[buf]
    L = [rdB(f + 16, VB, 0, u, 0), rdB(f + 16, VB, 0, u, 1)] + [rdA(f + 4 * i, VA + u, i) for i in range(4)]
    for j in range(1, 6):
        L += [rdB(f + 16 + 4 * j, VB, j, u, 0), rdB(f + 16 + 4 * j, VB, j, u, 1)]
    return L


def mm(i, j, A, B):
    return mfma(accreg(i, j), B, A) if j < 2 else mfma(accreg(i, j), A, B)


def full_mfmas(buf):
    f = FR[buf]
    return [mm(i if j % 2 == 0 else 3 - i, j, f + 4 * (i if j % 2 == 0 else 3 - i), f + 16 + 4 * j) for j in range(6) for i in range(4)]


FULL_NEED = [3, 4, 5, 6] + [8] * 4 + [10] * 4 + [12] * 4 + [14] * 4 + [16] * 4
a.e('s_mov_b32 s50, 0')
a.e('s_mov_b32 s51, 0')
a.vm_wait('d0', 'lgkmcnt(0)')
a.e('s_barrier')
stamp(2)
emit(full_reads(0, 0))
a.e('.p2align 6')
a.e('LOOP:')
BARP = E('BARP', 6)
for u in range(2):
    M = full_mfmas(u)
    R = full_reads(u ^ 1, u ^ 1)
    first = 0 if u == 0 else BARP
    issued = 0; done = 0
    for i in range(24):
        if u == 1 and i == first:
            a.e('s_waitcnt vmcnt(0) lgkmcnt(0)')
            done = 16
            a.e('s_barrier')
        if FULL_NEED[i] > done:
            a.e('s_waitcnt lgkmcnt(%d)', min(15, 16 - FULL_NEED[i] + issued))
            done = FULL_NEED[i]
        a.e(M[i])
        if u == 1 and i == 0:
            a.e('s_add_u32 s50, s50, %d', SLOT)
            a.e('s_cmp_eq_u32 s50, %d', 3 * SLOT)
            a.e('s_cselect_b32 s50, 0, s50')
        if u == 1 and 1 <= i <= 4:
            a.e('v_add_u32 v%d, s50, v%d', VA + i - 1, VAB + i - 1)
        if i >= first and issued < 16:
            a.e(R[issued]); issued += 1
a.e('s_add_u32 s51, s51, 1')
a.e('s_cmp_lt_u32 s51, 13')
a.e('s_cbranch_scc1 LOOP')
stamp(3)

AR = 192
BB = [16, 24, 32]
PKT = 40
T15A, T15B = 12, 14
A13 = FR[1]


class Unit:
    def __init__(self, reads, mf, need):
        self.reads, self.mf, self.need = reads, mf, need


def kvq_unit(st, u, js, bufB, Areg, loadA):
    if st == 13:
        va, vb, off, offq = VA + u, VB, 0, 0
    elif st == 14:
        va, vb, off, offq = VA + u, VB, SLOT, SLOT
    else:
        va, vb, off, offq = T15A + u, T15B, 0, None
    R, M, need = [], [], []
    pos = {}
    for k, j in enumerate(js):
        if st == 15 and j < 2:
            vbx, o = VBB, 0
        else:
            vbx, o = vb, off
        R += [rdB(bufB + 4 * k, vbx, j, u, 0, o), rdB(bufB + 4 * k, vbx, j, u, 1, o)]
        pos[j] = len(R)
        if k == 0 and loadA:
            for i in range(4):
                R.append(rdA(Areg + 4 * i, va, i, off))
                pos['A%d' % i] = len(R)
    for k, j in enumerate(js):
        for ii in range(4):
            i = ii if k % 2 == 0 else 3 - ii
            M.append(mm(i, j, Areg + 4 * i, bufB + 4 * k))
            need.append(max(pos[j], pos.get('A%d' % i, 0)))
    return Unit(R, M, need)


units = [Unit(full_reads(0, 0), full_mfmas(0), FULL_NEED),
         kvq_unit(13, 1, [2, 3, 4, 5], A13 + 16, A13, True)]
seq = [(14, 0), (14, 1), (15, 0), (15, 1)]
nb = 0
for n, (st, u) in enumerate(seq):
    units.append(kvq_unit(st, u, [2, 3], BB[nb % 3], AR + 16 * n, True)); nb += 1
for n, (st, u) in enumerate(seq):
    units.append(kvq_unit(st, u, [4, 5], BB[nb % 3], AR + 16 * n, False)); nb += 1
units.append(kvq_unit(13, 1, [0, 1], BB[nb % 3], A13, False)); nb += 1
for n, (st, u) in enumerate(seq):
    units.append(kvq_unit(st, u, [0, 1], BB[nb % 3], AR + 16 * n, False)); nb += 1

VST_, VFL = 3, 1


def pack_blocks(base, dst):
    L = []
    for ip in range(2):
        for b in range(2):
            for h in range(2):
                s = base + 8 * (2 * ip + h) + 4 * b
                for q in range(2):
                    L.append('v_cvt_pk_bf16_f32 v%d, v%d, v%d' % (dst + 8 * ip + 4 * b + 2 * h + q, s + 2 * q, s + 2 * q + 1))
    return L


def stage_writes(src, ldsbase):
    return [('DS', 'ds_write_b128 v%d, %s offset:%d' % (VST_, vr(src + 4 * k, 4), ldsbase + k * 1024)) for k in range(4)]


fill = {k: [] for k in range(len(units))}
fill[0] += ['v_add_u32 v%d, %d, v%d' % (T15A + u, S3, VAB + u) for u in range(2)]
fill[0] += ['v_add_u32 v%d, %d, v%d' % (T15B + n, S3 + 16384 - BK, VBB + n) for n in range(2)]
fill[0] += ['s_lshl_b32 s66, s3, 12', 'v_lshlrev_b32 v%d, 4, v2' % VST_, 'v_add_u32 v%d, s66, v%d' % (VST_, VST_),
            's_lshl_b32 s66, s3, 2', 's_add_u32 s66, s66, %d' % L_FLG, 'v_mov_b32 v%d, s66' % VFL, 'v_mov_b32 v0, 1']
PK_ = pack_blocks(KA, PKT)
kw = stage_writes(PKT, L_KST)
fill[6] += ['NOP8'] + PK_[0:4] + [kw[0]] + PK_[4:8] + [kw[1]] + PK_[8:12] + [kw[2]]
fill[7] += PK_[12:16] + [kw[3], ('DS', 'ds_write_b32 v%d, v0' % VFL)]
fill[7] += ['v_pk_max_u16 v72, v%d, v%d' % (PKT, PKT + 1)] + ['v_pk_max_u16 v72, v72, v%d' % (PKT + k) for k in range(2, 8)]
fill[8] += ['v_pk_max_u16 v72, v72, v%d' % (PKT + k) for k in range(8, 16)]
fill[9] += ['v_lshrrev_b32 v73, 16, v72', 'v_and_b32 v72, 0xffff, v72', 'v_max_u32 v72, v72, v73',
            'v_cmp_lt_u32 vcc, 0xc0db, v72', 's_cmp_lg_u64 vcc, 0', 's_cselect_b32 s66, 2, 1', 'v_mov_b32 v0, s66']
PV_ = pack_blocks(VV, PKT)
vw = stage_writes(PKT, 0)
fill[8] += ['v_add_u32 v%d, %d, v%d' % (VST_, L_VST, VST_)]
fill[10] += ['NOP8'] + PV_[0:4] + [vw[0]] + PV_[4:8] + [vw[1]] + PV_[8:12] + [vw[2]]
fill[11] += PV_[12:16] + [vw[3], ('DS', 'ds_write_b32 v%d, v0 offset:16' % VFL)]
barrier_before_reads = {2: 'b13', 4: 'b14'}

dsq = [('R', 0, k) for k in range(16)]
for k, U in enumerate(units):
    nxt = units[k + 1] if k + 1 < len(units) else None
    R = list(nxt.reads) if nxt else []
    F = list(fill[k])
    n = len(U.mf)
    rstart = 0
    if k + 1 in barrier_before_reads:
        rstart = 2 if n <= 8 else n - 10
    ri = 0
    for i in range(n):
        if k + 1 in barrier_before_reads and i == rstart:
            a.e('s_barrier')
        pos = [q for q, x in enumerate(dsq) if x[0] == 'R' and x[1] == k and x[2] < U.need[i]]
        if pos:
            cnt = len(dsq) - 1 - max(pos)
            a.e('s_waitcnt lgkmcnt(%d)', min(15, cnt))
            dsq = dsq[max(pos) + 1:]
        a.e(U.mf[i])
        left = n - i
        nr = 0
        if i >= rstart:
            want = -(-(len(R) - ri) // max(1, left - 2)) if len(R) - ri > 0 else 0
            nr = min(len(R) - ri, max(want, 1 if len(R) - ri > 0 else 0), 2)
        for _ in range(nr):
            a.e(R[ri]); dsq.append(('R', k + 1, ri)); ri += 1
        nf = -(-len(F) // left)
        for _ in range(nf):
            f = F.pop(0)
            if f == 'NOP8':
                nop(6)
            elif isinstance(f, tuple):
                a.e(f[1]); dsq.append(('W', k, 0))
            else:
                a.e(f)
    assert ri == len(R) and not F, (k, ri, len(R), F)
stamp(4)
QP = 16
nop(8)
for sb in range(4):
    dst = QP + 4 * sb if sb < 2 else PKT + 4 * (sb - 2)
    for db in range(2):
        for q in range(2):
            s = QA + 8 * sb + 4 * db + 2 * q
            a.e('v_cvt_pk_bf16_f32 v%d, v%d, v%d', dst + 2 * db + q, s, s + 1)
a.e('s_lshl_b32 s66, s3, 11')
a.e('v_lshlrev_b32 v3, 4, v2')
a.e('v_add_u32 v3, s66, v3')
a.e('ds_write_b128 v3, %s offset:%d', vr(PKT, 4), L_QH)
a.e('ds_write_b128 v3, %s offset:%d', vr(PKT + 4, 4), L_QH + 1024)
a.e('s_waitcnt lgkmcnt(0)')
a.e('s_barrier')
a.e('s_branch POST')

a.e('HELP:')
XR = 16
WVR = 48
GWF = 56
GACC = 64
TT = 72
XS = 80
WG = 96
WD = 160
HUB = 88
VMW, VMD, VL16 = 6, 7, 9
a.e('v_lshlrev_b32 v%d, 4, v2', VL16)
a.e('s_lshl_b32 s52, s5, 2')
a.e('s_add_u32 s52, s52, s44')
a.e('s_lshl_b32 s53, s52, 10')
a.e('s_lshl_b32 s66, s4, 6')
a.e('s_add_u32 s53, s53, s66')
a.e('s_add_u32 s53, s53, %d', WS_Z)
a.e('s_lshl_b32 s52, s52, 4')
a.e('s_add_u32 s52, s52, s4')
a.e('s_lshl_b32 s52, s52, 10')
a.e('s_add_u32 s52, s52, %d', WS_KV)
a.e('s_lshl_b32 s55, s%d, 2', sKQ)
a.e('s_add_u32 s55, s55, s44')
a.e('s_lshl_b32 s55, s55, 6')
a.e('s_add_u32 s55, s55, s%d', sCG)
a.e('s_lshl_b32 s55, s55, 8')
a.e('s_add_u32 s55, s55, %d', WS_YP)
a.e('s_cmp_ge_u32 s44, 2')
a.e('s_cbranch_scc1 WORK')

a.vm = list(vm_entry)


def dma(stage, parts='AQKV', dst=None):
    slot = (stage % 3) * SLOT
    tag = 'd%d' % stage
    L = []
    for ty, c in ((1, 'K'), (2, 'V'), (0, 'Q')):
        if c in parts:
            for b in range(4):
                d = slot + BQ + ty * 8192 if dst is None else dst[c]
                L.append((d + b * 2048, stage * 393216 + b * 98304 + ty * 2048, VOB, S_W))
    LA = [((slot if dst is None else dst['A']) + q * 2048, stage * 128 + q * 32768, VOA, S_X) for q in range(8)] if 'A' in parts else []
    L = L[:4] + LA + L[4:]
    for (d, so, v, s) in L:
        a.e('s_add_u32 m0, s72, %d', d)
        a.e('s_mov_b32 s66, %d', so)
        a.vm_issue(tag, 'buffer_load_dwordx4 v%d, %s, s66 offen lds', v, sr(s, 4))


a.vm_wait('d0')
a.e('s_barrier')
dma(2)
for i in range(13):
    a.vm_wait('d%d' % (i + 1))
    a.e('s_barrier')
    if 0 <= i - E('SB0', 0) < 10:
        stamp(1 + i - E('SB0', 0), 2)
    if i + 3 < 15:
        dma(i + 3)
    if i == 11:
        dma(15, 'AKV', {'A': S3, 'K': S3 + 16384, 'V': S3 + 24576})
    if i == 12:
        dma(15, 'Q')
a.vm_wait('d14')
a.e('s_barrier')
a.vm_wait('d15')
a.e('s_branch H_b14')

a.e('WORK:')
a.vm = list(vm_entry)
a.e('v_mov_b32 v14, 0')
a.e('v_lshlrev_b32 v8, 5, v2')
a.e('v_add_u32 v8, %d, v8', WS_KEY)
a.e('s_lshl_b32 s66, s2, 2')
a.e('s_add_u32 s66, s66, s44')
a.e('s_cmp_lg_u32 s66, 2')
a.e('s_cbranch_scc1 W_nn')
for q in range(4):
    a.e('s_movk_i32 s66, %d', q * 2048)
    a.e('buffer_load_dword v%d, v8, %s, s66 offen offset:4' % (TT + q, WSR) + RD)
a.e('s_memrealtime s[66:67]')
a.e('s_waitcnt vmcnt(0) lgkmcnt(0)')
a.e('s_or_b32 s66, s66, 1')
a.e('W_nl:')
a.e('s_add_u32 s66, s66, 2')
a.e('v_cmp_eq_u32 vcc, s66, v%d', TT)
for q in range(1, 4):
    a.e('v_cmp_eq_u32 s[68:69], s66, v%d', TT + q)
    a.e('s_or_b64 vcc, vcc, s[68:69]')
a.e('s_cbranch_vccnz W_nl')
a.e('v_mov_b32 v10, 0')
a.e('v_mov_b32 v11, s66')
a.e('s_mov_b64 exec, 1')
a.e('buffer_store_dword v11, v10, %s, 0 offen' % sr(S_DBG, 4) + WT)
a.e('s_mov_b64 exec, -1')
a.e('W_nn:')
a.vm_wait('d0')
a.e('s_barrier')
a.e('s_and_b32 s48, s44, 1')
if 'noslow' not in EXP:
    a.e('s_mov_b32 s68, s12')
    a.e('s_mov_b32 s69, s13')
    a.e('s_bitcmp0_b32 s64, 1')
    a.e('s_cselect_b32 s70, 0x%x, 0', 6291456)
    a.e('s_mov_b32 s71, 0x00020000')
    a.e('v_lshrrev_b32 v10, 3, v2')
    a.e('v_lshlrev_b32 v10, 11, v10')
    a.e('v_and_b32 v11, 7, v2')
    a.e('v_lshl_add_u32 v10, v11, 4, v10')
    a.e('s_lshl_b32 s66, s65, 1')
    a.e('s_add_u32 s66, s66, s48')
    a.e('s_mul_i32 s66, s66, %d', 48 * 2048)
    a.e('s_lshr_b32 s67, s64, 2')
    a.e('s_lshl_b32 s67, s67, 10')
    a.e('s_add_u32 s66, s66, s67')
    a.e('s_add_u32 s66, s66, 384')
    for q in range(6):
        a.vm_issue('pf', 'buffer_load_dwordx4 %s, v10, s[68:71], s66 offen', vr(224 + 4 * q, 4))
        if q < 5:
            a.e('s_add_u32 s66, s66, 16384')
a.e('s_lshl_b32 s50, s4, 7')
a.e('s_lshl_b32 s66, s5, 3')
a.e('s_add_u32 s50, s50, s66')
a.e('s_lshl_b32 s66, s48, 2')
a.e('s_add_u32 s50, s50, s66')
a.e('s_lshl_b32 s66, s50, 11')
a.e('s_add_u32 s67, s66, 4096')
for q in range(8):
    a.vm_issue('rows', 'buffer_load_dwordx4 %s, v%d, %s, s%d offen offset:%d', vr(XR + 4 * q, 4), VL16, sr(S_X, 4), 66 + (q >> 2), (q & 3) * 1024)
a.e('s_lshl_b32 s66, s48, 11')
a.e('s_add_u32 m0, s66, %d', L_KF)
a.e('s_nop 0')
for q in range(2):
    a.vm_issue('rows', 'buffer_load_dwordx4 v%d, %s, 0 offen offset:%d lds', VL16, sr(S_WV, 4), q * 1024)
a.e('s_lshl_b32 s51, s%d, 8', sKQ)
a.e('v_lshrrev_b32 v10, 3, v2')
a.e('v_and_b32 v11, 7, v2')
a.e('v_lshlrev_b32 v12, 5, v10')
a.e('v_add_u32 v12, s51, v12')
a.e('v_mul_u32_u24 v12, 7168, v12')
a.e('v_lshl_add_u32 v12, v11, 4, v12')
a.e('s_lshl_b32 s66, s%d, 7', sCG)
a.e('v_add_u32 v%d, s66, v12', VMW)
a.e('s_lshl_b32 s54, s48, 2')
a.e('s_add_u32 s54, s54, s%d', sKQ)
a.e('s_lshl_b32 s54, s54, 8')
a.e('s_lshl_b32 s66, s%d, 11', sCG)
a.e('s_add_u32 s54, s54, s66')
a.e('s_add_u32 s54, s54, %d', WS_HU)
for r in range(4):
    a.e('v_mov_b32 v%d, -1', TT + r)
a.e('v_and_b32 v12, 3, v2')
a.e('v_lshlrev_b32 v12, 4, v12')
a.e('v_add_u32 v12, s53, v12')
for (lo, n, base) in ((4, 4, ('s53', -2048)), (8, 16, ('s54', 0)), (24, 16, ('s55', 0)), (40, 16, ('s55', -32768))):
    a.e('s_add_u32 s66, %s, %d', base[0], base[1] & 0xffffffff)
    a.e('v_subrev_u32 v13, %d, v2', lo)
    a.e('v_cmp_gt_u32 vcc, %d, v13', n)
    a.e('v_lshlrev_b32 v13, 4, v13')
    a.e('v_add_u32 v13, s66, v13')
    a.e('v_cndmask_b32 v12, v12, v13, vcc')
a.e('s_sub_u32 s66, s52, 32768')
a.vm_issue('fill', 'buffer_store_dwordx4 %s, v%d, %s, s52 offen' + WT, vr(TT, 4), VL16, WSR)
a.vm_issue('fill', 'buffer_store_dwordx4 %s, v%d, %s, s66 offen' + WT, vr(TT, 4), VL16, WSR)
a.vm_issue('fill', 'buffer_store_dwordx4 %s, v12, %s, 0 offen' + WT, vr(TT, 4), WSR)
moe_n = [0]


def moe_load(cnt):
    for _ in range(cnt):
        n = moe_n[0]
        if n < 32:
            a.e('s_mov_b32 s66, %d', n * 7168)
            a.vm_issue('w%d' % n, 'buffer_load_dwordx4 %s, v%d, %s, s66 offen', vr(WG + 4 * n, 4), VMW, sr(S_MW, 4))
        moe_n[0] += 1


def wk0_only(lab):
    a.e('s_cmp_lg_u32 s48, 0')
    a.e('s_cbranch_scc1 %s', lab)


def g_row(row):
    acc = TT + 4 + row
    a.e('v_mov_b32 v%d, 0', acc)
    for q in range(8):
        x = XR + 8 * row + q
        a.e('v_lshlrev_b32 v%d, 16, v%d', TT, x)
        a.e('v_and_b32 v%d, 0xffff0000, v%d', TT + 1, x)
        a.e('v_mul_f32 v%d, v%d, v%d', TT, TT, GWF + 2 * q)
        a.e('v_mul_f32 v%d, v%d, v%d', TT + 1, TT + 1, GWF + 2 * q + 1)
        a.e('v_cvt_pk_bf16_f32 v%d, 0, v%d', TT, TT)
        a.e('v_cvt_pk_bf16_f32 v%d, 0, v%d', TT + 1, TT + 1)
        a.e('v_add_f32 v%d, v%d, v%d', acc, acc, TT)
        a.e('v_add_f32 v%d, v%d, v%d', acc, acc, TT + 1)


PS = E('PS', 4)
WL = [int(x) for x in os.environ.get('WL', '0,3,3,3,3,3,3,3,3,3,3,2,0').split(',')]
GL = [int(x) for x in os.environ.get('GL', '7,7,6,6,4,2').split(',')]
assert sum(WL) == 32 and sum(GL) == 32 and PS + 3 + len(GL) == 13
GDOT = E('GDOT', 0)
mark = {}
gdone = 0
for i in range(13):
    if i == 0:
        a.vm_wait('d1')
    if i == 1:
        a.vm_wait('rows')
    if i == 2:
        a.vm_wait('fill')
    a.e('s_waitcnt lgkmcnt(0)')
    a.e('s_barrier')
    if i == 1:
        wk0_only('W_k%d' % i)
        a.vm_uncounted('buffer_load_dword v15, v14, %s, 0 offen' % sr(S_DBG, 4) + RD)
        a.e('W_k%d:', i)
        mark['tag'] = a.issued
    if i == 2:
        wk0_only('W_k%d' % i)
        a.e('v_mov_b32 v10, %d', L_FLG + 32)
        a.e('ds_read_b32 v12, v10')
        a.e('s_waitcnt vmcnt(%d)', a.issued - mark['tag'])
        a.e('s_mov_b32 s67, 0')
        a.e('W_ts:')
        a.e('v_cmp_eq_u32 vcc, 0, v15')
        a.e('s_cbranch_vccz W_tok')
        a.e('s_add_u32 s67, s67, 1')
        a.e('s_cmp_ge_u32 s67, %d', SPIN)
        a.e('s_cbranch_scc1 W_tok')
        a.e('s_sleep 4')
        a.e('buffer_load_dword v15, v14, %s, 0 offen' % sr(S_DBG, 4) + RD)
        a.e('s_waitcnt vmcnt(0)')
        a.e('s_branch W_ts')
        a.e('W_tok:')
        a.e('s_lshl_b32 s66, s2, 5')
        a.e('s_add_u32 s66, s66, %d', WS_KEY)
        a.e('v_mov_b32 v10, s66')
        a.e('v_mov_b32 v13, v15')
        a.e('s_waitcnt lgkmcnt(0)')
        a.e('s_mov_b64 exec, 1')
        a.vm_uncounted('buffer_store_dwordx2 v[12:13], v10, %s, 0 offen' % WSR + WT)
        a.e('s_mov_b64 exec, -1')
        a.e('W_k%d:', i)

    def collect():
        for q in range(4):
            a.e('s_movk_i32 s66, %d', q * 2048)
            a.vm_uncounted('buffer_load_dwordx2 %s, v8, %s, s66 offen' % (vr(XS + 2 * q, 2), WSR) + RD)
    if i == PS:
        wk0_only('W_k%d' % i)
        collect()
        a.e('W_k%d:', i)
        mark['keys'] = a.issued
    if i == PS + 2:
        a.e('v_mov_b32 v10, %d', L_FLG + 36)
        a.e('ds_read_b32 v11, v10')
        a.e('v_lshrrev_b32 v10, 3, v2')
        a.e('v_lshlrev_b32 v10, 6, v10')
        a.e('s_waitcnt lgkmcnt(0)')
        a.e('v_readfirstlane_b32 s66, v11')
        a.e('s_and_b32 s66, s66, 0x7ff')
        a.e('s_sub_u32 s66, 2047, s66')
        a.e('s_lshl_b32 s66, s66, 10')
        a.e('s_add_u32 s66, s66, s51')
        a.e('s_lshl_b32 s66, s66, 1')
        for q in range(4):
            a.vm_issue('xs', 'buffer_load_dwordx4 %s, v10, %s, s66 offen offset:%d', vr(XS + 4 * q, 4), sr(S_X, 4), 16 * q)
    moe_load(WL[i])
    if i == 1:
        a.e('v_add_u32 v10, %d, v%d', L_KF, VL16)
        for q in range(2):
            a.e('ds_read_b128 %s, v10 offset:%d', vr(WVR + 4 * q, 4), q * 1024)
        for r in range(4):
            a.e('v_mov_b32 v%d, 0', TT + r)
        a.e('s_waitcnt lgkmcnt(0)')
        for q in range(8):
            for r in range(4):
                a.e('v_dot2_f32_bf16 v%d, v%d, v%d, v%d', TT + r, XR + 8 * r + q, WVR + q, TT + r)
        nop(3)
        for q in range(2):
            a.e('ds_read_b128 %s, v10 offset:%d', vr(WVR + 4 * q, 4), 2048 + q * 1024)
        wave_reduce([TT, TT + 1, TT + 2, TT + 3], 'v_add_f32', 68)
        a.e('s_sub_u32 s66, %d, s50', 2047 + 0x8000)
        for r in range(4):
            x = TT + r
            a.e('v_cvt_pk_bf16_f32 v%d, 0, v%d', x, x)
            a.e('v_ashrrev_i32 v%d, 31, v%d', TT + 4, x)
            a.e('v_or_b32 v%d, 0x80000000, v%d', TT + 4, TT + 4)
            a.e('v_xor_b32 v%d, v%d, v%d', x, x, TT + 4)
            a.e('v_and_b32 v%d, 0xffff0000, v%d', x, x)
            a.e('v_or_b32 v%d, s66, v%d', x, x)
            a.e('s_sub_u32 s66, s66, 1')
        a.e('v_max_u32 v%d, v%d, v%d', TT, TT, TT + 1)
        a.e('v_max3_u32 v%d, v%d, v%d, v%d', TT, TT, TT + 2, TT + 3)
        a.e('v_mov_b32 v10, %d', L_FLG + 32)
        a.e('s_mov_b64 exec, 1')
        a.e('ds_max_u32 v10, v%d', TT)
        a.e('s_mov_b64 exec, -1')
    if i == 2:
        for q in range(8):
            a.e('v_lshlrev_b32 v%d, 16, v%d', GWF + 2 * q, WVR + q)
            a.e('v_and_b32 v%d, 0xffff0000, v%d', GWF + 2 * q + 1, WVR + q)
        g_row(0)
    if i == 3:
        g_row(1); g_row(2)
    if i == 4:
        g_row(3)
    if i == PS + 1:
        wk0_only('W_c%d' % i)
        a.e('s_waitcnt vmcnt(%d)', a.issued - mark['keys'])
        a.e('s_mov_b32 s67, 0')
        a.e('W_cs:')
        a.e('v_xor_b32 v10, v%d, v15', XS + 1)
        for q in range(1, 4):
            a.e('v_xor_b32 v11, v%d, v15', XS + 2 * q + 1)
            a.e('v_or_b32 v10, v10, v11')
        a.e('v_cmp_ne_u32 vcc, 0, v10')
        a.e('s_cbranch_vccz W_cok')
        a.e('s_add_u32 s67, s67, 1')
        a.e('s_cmp_ge_u32 s67, %d', SPIN)
        a.e('s_cbranch_scc1 W_cok')
        a.e('s_sleep 4')
        collect()
        a.e('s_waitcnt vmcnt(0)')
        a.e('s_branch W_cs')
        a.e('W_cok:')
        a.e('v_max_u32 v12, v%d, v%d', XS, XS + 2)
        a.e('v_max3_u32 v12, v12, v%d, v%d', XS + 4, XS + 6)
        wave_reduce([12], 'v_max_u32', 68)
        a.e('v_mov_b32 v10, %d', L_FLG + 36)
        a.e('ds_write_b32 v10, v12')
        a.e('W_c%d:', i)
    if i == 5:
        G0 = TT + 4
        GS = [G0 + r for r in range(4)]
        wave_reduce(GS, 'v_add_f32', 68)
        for r in GS:
            a.e('v_cvt_pk_bf16_f32 v%d, 0, v%d', r, r)
        for r in GS:
            a.e('v_mul_f32 v%d, s%d, v%d', r, sL2E, r)
        for r in GS:
            a.e('v_exp_f32 v%d, -v%d', r, r)
        for r in GS:
            a.e('v_add_f32 v%d, 1.0, v%d', r, r)
        for r in GS:
            a.e('v_rcp_f32 v%d, v%d', r, r)
        for r in GS:
            a.e('v_cvt_pk_bf16_f32 v%d, 0, v%d', r, r)
        a.e('s_lshl_b32 s66, s50, 4')
        a.e('s_add_u32 s66, s66, %d', WS_G)
        a.e('v_mov_b32 v10, s66')
        a.e('s_mov_b64 exec, 1')
        a.vm_issue('g', 'buffer_store_dwordx4 %s, v10, %s, 0 offen' + WT, vr(G0, 4), WSR)
        a.e('s_mov_b64 exec, -1')
    if i == PS + 3:
        a.vm_wait('xs')
        for r in range(8):
            a.e('v_mov_b32 v%d, 0', GACC + r)
    if i >= PS + 3:
        for n in range(gdone, gdone + GL[i - PS - 3]):
            assert n < moe_n[0]
            a.vm_wait('w%d' % n)
            emit(gemv_rows(WG + 4 * n, XS, n, GACC, TT, GDOT))
        gdone += GL[i - PS - 3]
nop(3)
red8(GACC, TT, 2)
red8_col(TT + 4, TT + 5, 2)
a.vm_issue('hu', 'buffer_store_dword v%d, v%d, %s, s54 offen' + WT, GACC, TT + 4, WSR)
a.e('s_barrier')
a.e('H_b14:')
a.e('s_barrier')
a.vm = []
if 'noprio' not in EXP:
    a.e('s_setprio 3')
a.e('s_lshl_b32 s56, s4, 3')
a.e('s_lshl_b32 s66, s44, 1')
a.e('s_add_u32 s56, s56, s66')
a.e('s_lshl_b32 s56, s56, 15')
a.e('s_lshl_b32 s66, s5, 11')
a.e('s_add_u32 s56, s56, s66')
for r in range(4):
    a.e('v_mov_b32 v%d, -1', TT + r)
for q in range(4):
    a.e('s_add_u32 s66, s56, %d', WS_O + (q >> 1) * 32768)
    a.vm_issue('ofill', 'buffer_store_dwordx4 %s, v%d, %s, s66 offen offset:%d' + WT, vr(TT, 4), VL16, WSR, (q & 1) * 1024)
a.e('v_lshrrev_b32 v10, 3, v2')
a.e('v_and_b32 v11, 7, v2')
a.e('v_lshlrev_b32 v12, 3, v10')
a.e('s_lshl_b32 s66, s%d, 6', sCG)
a.e('v_add_u32 v12, s66, v12')
a.e('v_lshlrev_b32 v12, 11, v12')
a.e('v_lshl_add_u32 v12, v11, 4, v12')
a.e('s_lshl_b32 s66, s%d, 9', sKQ)
a.e('s_lshl_b32 s67, s44, 7')
a.e('s_add_u32 s66, s66, s67')
a.e('v_add_u32 v%d, s66, v12', VMD)
for n in range(8):
    a.e('s_mov_b32 s66, %d', n * 2048)
    a.vm_issue('wd', 'buffer_load_dwordx4 %s, v%d, %s, s66 offen', vr(WD + 4 * n, 4), VMD, sr(S_WD, 4))
KR, VR, PKH, KVA, ZA, ONES = 16, 208, 32, 192, 200, 204
a.e('s_and_b32 s66, s44, 2')
a.e('s_lshl_b32 s67, s66, 2')
a.e('s_add_u32 s67, s67, %d', L_FLG)
a.e('v_mov_b32 v10, s67')
a.e('s_lshl_b32 s66, s66, 12')
a.e('s_and_b32 s67, s44, 1')
a.e('s_lshl_b32 s67, s67, 10')
a.e('v_add_u32 v11, s66, v%d', VL16)
a.e('v_add_u32 v12, s67, v11')
a.e('v_add_u32 v11, %d, v11', L_VST)
a.e('s_mov_b32 s70, 0x%x', LOG2E)
a.e('s_mov_b32 s71, 0x%x', LOG2E)
for r in range(4):
    a.e('v_mov_b32 v%d, 0x3f803f80', ONES + r)
a.e('H_fk:')
a.e('ds_read_b64 v[14:15], v10')
a.e('s_waitcnt lgkmcnt(0)')
a.e('v_min_u32 v14, v14, v15')
a.e('v_cmp_eq_u32 vcc, 0, v14')
a.e('s_cbranch_vccnz H_fk')
stamp(2)
for k in range(4):
    a.e('ds_read_b128 %s, v12 offset:%d', vr(KR + 4 * k, 4), L_KST + k * 2048)
P = phi_packed(KR, PKH, 16, TT)
per = len(P) // 4
for k in range(4):
    a.e('s_waitcnt lgkmcnt(%d)', 3 - k)
    emit(P[k * per:(k + 1) * per])
stamp(4)
a.e('H_fv:')
a.e('ds_read_b64 v[14:15], v10 offset:16')
a.e('s_waitcnt lgkmcnt(0)')
a.e('v_min_u32 v13, v14, v15')
a.e('v_cmp_eq_u32 vcc, 0, v13')
a.e('s_cbranch_vccnz H_fv')
for k in range(4):
    for eb in range(2):
        a.e('ds_read_b128 %s, v11 offset:%d', vr(VR + 8 * k + 4 * eb, 4), k * 2048 + eb * 1024)
a.e('v_max_u32 v13, v14, v15')
a.e('v_cmp_eq_u32 vcc, 2, v13')
a.e('s_cbranch_vccz H_ne')
phi_eps(PKH, 16, TT)
a.e('H_ne:')
nop(1)
for k in range(4):
    a.e(mfma(ZA, PKH + 4 * k, ONES, '0' if k == 0 else None))
    for eb in range(2):
        a.e('s_waitcnt lgkmcnt(%d)', 7 - 2 * k - eb)
        a.e(mfma(KVA + 4 * eb, PKH + 4 * k, VR + 8 * k + 4 * eb, '0' if k == 0 else None))
a.e('v_lshrrev_b32 v13, 4, v2')
a.e('v_lshlrev_b32 v13, 4, v13')
a.e('v_and_b32 v14, 15, v2')
a.e('v_cmp_eq_u32 s[68:69], 0, v14')
a.e('s_lshl_b32 s66, s44, 11')
a.e('v_add_u32 v3, s66, v%d', VL16)
a.vm_wait('ofill')
nop(2)
for q in range(4):
    a.e('v_cvt_pk_bf16_f32 v%d, v%d, v%d', TT + q, KVA + 2 * q, KVA + 2 * q + 1)
a.vm_issue('kvs', 'buffer_store_dwordx4 %s, v%d, %s, s52 offen' + WT, vr(TT, 4), VL16, WSR)
a.e('s_mov_b64 exec, s[68:69]')
a.vm_issue('kvs', 'buffer_store_dwordx4 %s, v13, %s, s53 offen' + WT, vr(ZA, 4), WSR)
a.e('s_mov_b64 exec, -1')
stamp(3)
a.e('s_lshl_b32 s62, s%d, 11', sCG)
a.e('s_add_u32 s62, s62, %d', WS_HU)
for q in range(2):
    a.vm_issue('hul', 'buffer_load_dwordx4 %s, v%d, %s, s62 offen offset:%d' + RD, vr(HUB + 4 * q, 4), VL16, WSR, q * 1024)
a.e('s_setprio 0')
a.e('s_barrier')
a.e('ds_read_b128 %s, v3 offset:%d', vr(QP, 4), L_QH)
a.e('ds_read_b128 %s, v3 offset:%d', vr(QP + 4, 4), L_QH + 1024)
vm_help = list(a.vm)

a.e('POST:')
a.vm = []
stamp(5)
PQ = 24
KB, KACC, ZB, PRF = 192, 224, 232, 236
VWO, VKV, VZ, VPR = 10, 11, 12, 13
a.e('v_lshlrev_b32 v%d, 4, v2', VL16)
a.e('v_lshrrev_b32 v14, 3, v2')
a.e('s_lshl_b32 s66, s45, 5')
a.e('s_lshl_b32 s67, s44, 3')
a.e('s_add_u32 s66, s66, s67')
a.e('v_add_u32 v14, s66, v14')
a.e('v_lshlrev_b32 v14, 11, v14')
a.e('v_lshrrev_b32 v15, 4, v2')
a.e('v_lshlrev_b32 v15, 1, v15')
a.e('v_and_b32 v3, 7, v2')
a.e('v_xor_b32 v15, v15, v3')
a.e('v_lshl_add_u32 v14, v15, 4, v14')
a.e('s_lshl_b32 s66, s7, 7')
a.e('v_add_u32 v%d, s66, v14', VWO)
a.e('s_lshl_b32 s57, s45, 12')
a.e('s_add_u32 s57, s57, s72')
rounds = [(kh, m) for m in range(8) for kh in range(2) if (kh, m) != (0, 3)] + [(0, 3)]


def wo_round():
    kh, m = rounds.pop(0)
    a.e('s_add_u32 m0, s57, %d', kh * 65536 + m * 8192)
    a.e('s_mov_b32 s66, %d', (2 * m + kh) * 131072)
    a.vm_issue('wo', 'buffer_load_dwordx4 v%d, %s, s66 offen lds', VWO, sr(S_WO, 4))


NP1 = E('NP1', 4)
for _ in range(NP1):
    wo_round()
a.e('s_lshl_b32 s58, s5, 2')
a.e('s_add_u32 s58, s58, s44')
a.e('s_lshl_b32 s66, s58, 14')
a.e('s_lshl_b32 s67, s45, 9')
a.e('s_add_u32 s66, s66, s67')
a.e('s_add_u32 s66, s66, %d', WS_KV)
a.e('v_lshrrev_b32 v14, 5, v2')
a.e('v_and_b32 v15, 31, v2')
a.e('v_lshlrev_b32 v15, 4, v15')
a.e('v_lshl_add_u32 v14, v14, 10, v15')
a.e('v_add_u32 v%d, s66, v14', VKV)
a.e('s_lshl_b32 s66, s58, 10')
a.e('s_add_u32 s66, s66, %d', WS_Z)
a.e('v_and_b32 v14, 15, v2')
a.e('v_lshlrev_b32 v14, 6, v14')
a.e('v_lshrrev_b32 v15, 4, v2')
a.e('v_lshl_add_u32 v14, v15, 4, v14')
a.e('v_add_u32 v%d, s66, v14', VZ)
a.e('s_lshl_b32 s66, s6, 6')
a.e('s_add_u32 s66, s66, %d', WS_Z)
a.e('v_lshlrev_b32 v14, 10, v2')
a.e('v_add_u32 v%d, s66, v14', VPR)
a.e('s_mov_b32 s70, 0x%x', LOG2E)
a.e('s_mov_b32 s71, 0x%x', LOG2E)
a.e('s_movk_i32 s%d, 0x3f80', sSLO)
a.e('s_mov_b32 s%d, 0x3f800000', sSHI)
a.e('s_waitcnt lgkmcnt(0)')
emit(phi_packed(QP, PQ, 8, 32, 40))
a.e('v_cmp_gt_f32 vcc, 0x3a800000, v40')
a.e('s_cbranch_vccz P_qd')
phi_eps(PQ, 8, 32)
a.e('P_qd:')
for r in range(8):
    a.e('v_mov_b32 v%d, 0', KACC + r)
H1D = E('H1D', 0)
if H1D:
    a.e('s_sleep %d', H1D)
stamp(6)
a.e('s_cmp_eq_u32 s45, 0')
a.e('s_movk_i32 s66, 0x1ff')
a.e('s_cselect_b32 s%d, s66, 0xff', sPEND)
a.e('s_cmp_eq_u32 s3, 0')
a.e('s_cselect_b32 s%d, 0x3ff, s%d', sPEND, sPEND)


def h1_issue(i, counted):
    if i < 8:
        a.e('s_movk_i32 s66, %d', i * 2048)
        ins = 'buffer_load_dwordx4 %s, v%d, %s, s66 offen' % (vr(KB + 4 * i, 4), VKV, WSR) + RD
    elif i == 8:
        ins = 'buffer_load_dwordx4 %s, v%d, %s, 0 offen' % (vr(ZB, 4), VZ, WSR) + RD
    else:
        ins = 'buffer_load_dword v%d, v%d, %s, 0 offen' % (PRF, VPR, WSR) + RD
    if counted:
        a.vm_issue('kv%d' % i, ins)
    else:
        a.vm_uncounted(ins)


def h1_guarded_issue(i, tag):
    a.e('s_bitcmp1_b32 s%d, %d', sPEND, i)
    a.e('s_cbranch_scc0 %s', tag)
    h1_issue(i, False)
    a.e('%s:', tag)


def h1_check(i, tag, guarded):
    if guarded:
        a.e('s_bitcmp1_b32 s%d, %d', sPEND, i)
        a.e('s_cbranch_scc0 %s', tag)
    b = KB + 4 * i if i < 8 else ZB
    if i == 9:
        a.e('v_cmp_eq_u32 vcc, -1, v%d', PRF)
    else:
        a.e('v_max3_u32 v14, v%d, v%d, v%d', b, b + 1, b + 2)
        a.e('v_max_u32 v14, v14, v%d', b + 3)
        a.e('v_cmp_eq_u32 vcc, -1, v14')
    a.e('s_cbranch_vccnz %s', tag)
    if i < 8:
        for q in range(4):
            a.e('v_dot2_f32_bf16 v%d, v%d, s%d, v%d', KACC + 2 * q, b + q, sSLO, KACC + 2 * q)
            a.e('v_dot2_f32_bf16 v%d, v%d, s%d, v%d', KACC + 2 * q + 1, b + q, sSHI, KACC + 2 * q + 1)
    if i == 8:
        for p in ['quad_perm:[1,0,3,2]', 'quad_perm:[2,3,0,1]', 'row_half_mirror', 'row_mirror']:
            for r in range(4):
                a.e('v_add_f32_dpp v%d, v%d, v%d %s row_mask:0xf bank_mask:0xf', ZB + r, ZB + r, ZB + r, p)
        a.e('v_cvt_pk_bf16_f32 v%d, v%d, v%d', ZB, ZB, ZB + 1)
        a.e('v_cvt_pk_bf16_f32 v%d, v%d, v%d', ZB + 1, ZB + 2, ZB + 3)
        a.e('s_lshr_b32 s66, s44, 1')
        a.e('s_lshl_b32 s66, s66, 6')
        a.e('s_and_b32 s67, s44, 1')
        a.e('s_lshl_b32 s67, s67, 3')
        a.e('s_add_u32 s66, s66, s67')
        a.e('s_add_u32 s66, s66, %d', L_ZF)
        a.e('v_lshrrev_b32 v14, 4, v2')
        a.e('v_lshlrev_b32 v14, 4, v14')
        a.e('v_add_u32 v14, s66, v14')
        a.e('ds_write_b64 v14, %s', vr(ZB, 2))
    a.e('s_bitset0_b32 s%d, %d', sPEND, i)
    a.e('%s:', tag)


h1_guarded_issue(9, 'P_i9')
h1_guarded_issue(8, 'P_i8')
n0 = a.issued
for i in range(8):
    h1_issue(i, True)
a.e('s_cmp_eq_u32 s45, 0')
a.e('s_cbranch_scc1 P_ng')
a.e('s_waitcnt vmcnt(%d)', NP1 + 8)
a.e('s_mov_b32 s59, 0')
a.e('Q_hchk:')
a.e('v_max3_u32 v5, v%d, v%d, v%d', HUB, HUB + 1, HUB + 2)
a.e('v_max3_u32 v5, v5, v%d, v%d', HUB + 3, HUB + 4)
a.e('v_max3_u32 v5, v5, v%d, v%d', HUB + 5, HUB + 6)
a.e('v_max_u32 v5, v5, v%d', HUB + 7)
a.e('v_cmp_eq_u32 vcc, -1, v5')
a.e('s_cbranch_vccz Q_hok')
a.e('s_add_u32 s59, s59, 1')
a.e('s_cmp_ge_u32 s59, %d', SPIN)
a.e('s_cbranch_scc1 Q_hok')
a.e('s_sleep 4')
for q in range(2):
    a.e('buffer_load_dwordx4 %s, v%d, %s, s62 offen offset:%d' % (vr(HUB + 4 * q, 4), VL16, WSR, q * 1024) + RD)
a.e('s_waitcnt vmcnt(0)')
a.e('s_branch Q_hchk')
a.e('Q_hok:')
for m in range(2):
    for q in range(2):
        a.e('v_permlane16_swap_b32 v%d, v%d', HUB + 4 * m + q, HUB + 4 * m + 2 + q)
for m in range(2):
    for q in range(2):
        a.e('v_add_f32 v%d, v%d, v%d', HUB + 4 * m + q, HUB + 4 * m + q, HUB + 4 * m + 2 + q)
a.e('v_and_b32 v5, 15, v2')
a.e('v_lshlrev_b32 v5, 3, v5')
for m in range(2):
    a.e('v_permlane32_swap_b32 v%d, v%d', HUB + 4 * m, HUB + 4 * m + 1)
a.e('v_bfe_u32 v6, v2, 4, 1')
a.e('v_lshl_add_u32 v5, v6, 2, v5')
a.e('v_lshrrev_b32 v6, 5, v2')
a.e('v_lshl_add_u32 v5, v6, 1, v5')
G_, U_, T_ = HUB, HUB + 4, HUB + 1
a.e('v_add_f32 v%d, v%d, v%d', G_, HUB, HUB + 1)
a.e('v_add_f32 v%d, v%d, v%d', U_, HUB + 4, HUB + 5)
a.e('s_lshl_b32 s66, s44, 7')
a.e('s_add_u32 s66, s66, %d', L_HS)
a.e('v_cvt_pk_bf16_f32 v%d, 0, v%d', G_, G_)
a.e('v_cvt_pk_bf16_f32 v%d, 0, v%d', U_, U_)
a.e('v_mul_f32 v%d, s%d, v%d', T_, sL2E, G_)
a.e('v_exp_f32 v%d, -v%d', T_, T_)
a.e('v_add_u32 v5, s66, v5')
a.e('v_add_f32 v%d, 1.0, v%d', T_, T_)
a.e('v_rcp_f32 v%d, v%d', T_, T_)
a.e('v_lshrrev_b32 v6, 3, v2')
a.e('v_lshlrev_b32 v6, 4, v6')
a.e('v_mul_f32 v%d, v%d, v%d', T_, T_, G_)
a.e('v_cvt_pk_bf16_f32 v%d, 0, v%d', T_, T_)
a.e('v_add_u32 v6, s66, v6')
a.e('v_mul_f32 v%d, v%d, v%d', T_, T_, U_)
a.e('v_cvt_pk_bf16_f32 v%d, v%d, v%d', T_, T_, T_)
a.e('ds_write_b16 v5, v%d', T_)
a.e('ds_read_b128 %s, v6', vr(HUB + 4, 4))
for r in range(8):
    a.e('v_mov_b32 v%d, 0', GACC + r)
a.e('s_waitcnt lgkmcnt(0)')
for n in range(8):
    emit(gemv_rows(WD + 4 * n, HUB + 4, n, GACC, TT, True))
nop(3)
red8(GACC, TT, 2)
red8_col(TT + 4, TT + 5, 2)
a.vm_uncounted('buffer_store_dword v%d, v%d, %s, s55 offen' % (GACC, TT + 4, WSR) + WT)
a.e('P_ng:')
for i in range(8):
    a.vm_wait('kv%d' % i)
    if i == 0:
        h1_check(9, 'P_c9', True)
        h1_check(8, 'P_c8', True)
    h1_check(i, 'P_c%d' % i, False)
    if len(rounds) > E('NP3', 3):
        wo_round()
vm_keep = list(a.vm)
a.e('s_cmp_eq_u32 s%d, 0', sPEND)
a.e('s_cbranch_scc1 P_h1ok')
a.e('s_mov_b32 s59, 0')
a.e('P_retry:')
a.e('s_sleep 2')
for i in range(10):
    h1_guarded_issue(i, 'P_ri%d' % i)
a.e('s_waitcnt vmcnt(0)')
for i in range(10):
    h1_check(i, 'P_rc%d' % i, True)
a.e('s_add_u32 s59, s59, 1')
a.e('s_cmp_ge_u32 s59, %d', SPIN)
a.e('s_cbranch_scc1 P_h1ok')
a.e('s_cmp_lg_u32 s%d, 0', sPEND)
a.e('s_cbranch_scc1 P_retry')
a.e('P_h1ok:')
a.vm = vm_keep
a.e('s_lshr_b32 s66, s44, 1')
a.e('s_lshl_b32 s66, s66, 11')
a.e('s_and_b32 s67, s44, 1')
a.e('s_lshl_b32 s67, s67, 3')
a.e('s_add_u32 s66, s66, s67')
a.e('s_lshl_b32 s67, s45, 9')
a.e('s_add_u32 s66, s66, s67')
a.e('s_add_u32 s66, s66, %d', L_KF)
a.e('v_lshrrev_b32 v14, 5, v2')
a.e('v_and_b32 v15, 31, v2')
a.e('v_lshlrev_b32 v15, 4, v15')
a.e('v_lshl_add_u32 v14, v14, 10, v15')
for q in range(4):
    a.e('v_permlane32_swap_b32 v%d, v%d', KACC + q, KACC + 4 + q)
a.e('v_add_u32 v14, s66, v14')
for q in range(4):
    a.e('v_add_f32 v%d, v%d, v%d', KACC + q, KACC + q, KACC + 4 + q)
a.e('v_cvt_pk_bf16_f32 v%d, v%d, v%d', KACC, KACC, KACC + 1)
a.e('v_cvt_pk_bf16_f32 v%d, v%d, v%d', KACC + 1, KACC + 2, KACC + 3)
a.e('ds_write_b64 v14, %s', vr(KACC, 2))
KF, ZF, NA, DEN = 32, 40, 44, 60
a.e('s_lshr_b32 s49, s44, 1')
a.e('s_lshl_b32 s66, s49, 11')
a.e('s_add_u32 s66, s66, %d', L_KF)
a.e('v_add_u32 v14, s66, v%d', VL16)
a.e('s_lshl_b32 s66, s49, 6')
a.e('s_add_u32 s66, s66, %d', L_ZF)
a.e('v_lshrrev_b32 v15, 4, v2')
a.e('v_lshlrev_b32 v15, 4, v15')
a.e('v_add_u32 v15, s66, v15')
a.e('s_and_b32 s66, s44, 1')
a.e('s_lshl_b32 s66, s66, 2')
a.e('s_lshl_b32 s67, s45, 1')
a.e('s_add_u32 s66, s66, s67')
a.e('s_lshl_b32 s67, s4, 3')
a.e('s_add_u32 s66, s66, s67')
a.e('s_lshl_b32 s66, s66, 5')
a.e('s_lshl_b32 s67, s5, 1')
a.e('s_add_u32 s66, s66, s67')
a.e('s_add_u32 s66, s66, s49')
a.e('s_lshl_b32 s60, s66, 10')
a.e('s_add_u32 s61, s60, 32768')
a.e('s_waitcnt lgkmcnt(0)')
a.e('s_barrier')
stamp(7)
a.e('ds_read_b128 %s, v15', vr(ZF, 4))
a.e('ds_read_b128 %s, v14', vr(KF, 4))
a.e('ds_read_b128 %s, v14 offset:1024', vr(KF + 4, 4))
a.e('v_mov_b32 v3, %d', L_FLG + 36)
a.e('ds_read_b32 v4, v3')
a.e('s_waitcnt lgkmcnt(3)')
for sb in range(2):
    a.e(mfma(DEN + 4 * sb, ZF, PQ + 4 * sb, '0'))
a.e('s_waitcnt lgkmcnt(1)')
for sb in range(2):
    for eb in range(2):
        a.e(mfma(NA + 8 * sb + 4 * eb, KF + 4 * eb, PQ + 4 * sb, '0'))
nop(4)
for sb in range(2):
    a.e('v_cvt_pk_bf16_f32 v%d, 0, v%d', DEN + 4 * sb, DEN + 4 * sb)
for sb in range(2):
    a.e('v_add_f32 v%d, s%d, v%d', DEN + 4 * sb, sEPS, DEN + 4 * sb)
for sb in range(2):
    a.e('v_cvt_pk_bf16_f32 v%d, 0, v%d', DEN + 4 * sb, DEN + 4 * sb)
for sb in range(2):
    a.e('v_rcp_f32 v%d, v%d', DEN + 4 * sb, DEN + 4 * sb)
for sb in range(2):
    N = NA + 8 * sb
    for r in range(8):
        a.e('v_cvt_pk_bf16_f32 v%d, 0, v%d', N + r, N + r)
    for q in range(4):
        a.e('v_pk_mul_f32 %s, %s, %s op_sel_hi:[1,0]', vr(N + 2 * q, 2), vr(N + 2 * q, 2), vr(DEN + 4 * sb, 2))
    for q in range(4):
        a.e('v_cvt_pk_bf16_f32 v%d, v%d, v%d', KF + 4 * sb + q, N + 2 * q, N + 2 * q + 1)
    a.vm_issue('os', 'buffer_store_dwordx4 %s, v%d, %s, s%d offen' + WT, vr(KF + 4 * sb, 4), VL16, WSR, 60 + sb)
stamp(8)
a.e('s_waitcnt lgkmcnt(0)')
a.e('v_readfirstlane_b32 s%d, v4', sKEY)

OB, WOF, AC2, XO, GR, OM, T2, YL = 96, 192, 224, 144, 152, 153, 16, 32
VO0, VO1, VW, VX, VROW = 3, 4, 10, 14, 15
while rounds:
    wo_round()
a.e('s_and_b32 s%d, s%d, 0x7ff', sIDX, sKEY)
a.e('s_sub_u32 s%d, 2047, s%d', sIDX, sIDX)
a.e('s_lshl_b32 s66, s6, 7')
a.e('s_lshl_b32 s67, s44, 5')
a.e('s_add_u32 s66, s66, s67')
a.e('s_lshl_b32 s67, s45, 4')
a.e('s_add_u32 s66, s66, s67')
a.e('v_and_b32 v%d, 15, v2', VROW)
a.e('v_add_u32 v%d, s66, v%d', VROW, VROW)
a.e('v_lshlrev_b32 v%d, 11, v%d', VX, VROW)
a.e('v_bfe_u32 v5, v2, 4, 1')
a.e('v_lshl_add_u32 v%d, v5, 5, v%d', VX, VX)
a.e('v_lshrrev_b32 v5, 5, v2')
a.e('v_lshl_add_u32 v%d, v5, 4, v%d', VX, VX)
a.e('s_lshl_b32 s66, s7, 7')
a.e('v_add_u32 v%d, s66, v%d', VX, VX)
a.e('v_lshrrev_b32 v5, 2, v%d', VROW)
a.e('v_lshlrev_b32 v5, 6, v5')
a.e('v_and_b32 v6, 3, v2')
a.e('v_lshl_add_u32 v5, v6, 2, v5')
a.e('s_mov_b32 s66, %d', WS_G)
a.vm_issue('xo', 'buffer_load_dword v%d, v5, %s, s66 offen' + RD, GR, WSR)
for q in range(2):
    a.vm_issue('xo', 'buffer_load_dwordx4 %s, v%d, %s, 0 offen offset:%d', vr(XO + 4 * q, 4), VX, sr(S_X, 4), 64 * q)
a.e('s_lshl_b32 s66, s6, 3')
a.e('s_lshl_b32 s67, s44, 1')
a.e('s_add_u32 s66, s66, s67')
a.e('s_lshl_b32 s66, s66, 15')
a.e('v_add_u32 v%d, s66, v%d', VO0, VL16)
a.e('v_add_u32 v%d, 32768, v%d', VO1, VO0)
a.e('s_and_b32 s63, s2, 6')
a.e('s_mov_b32 s48, s63')
a.e('s_lshl_b32 s50, s45, 11')


def o_loads(g, counted=True, sreg=66):
    b = OB + 16 * (g % 3)
    for hh in range(2):
        for sb in range(2):
            ins = 'buffer_load_dwordx4 %s, v%d, %s, s%d offen offset:%d' % (vr(b + 8 * hh + 4 * sb, 4), VO0 + sb, WSR, sreg, hh * 1024) + RD
            if counted:
                a.vm_issue('o%d' % g, ins)
            else:
                a.vm_uncounted(ins)


def o_soff(g, dst):
    a.e('s_add_u32 s%d, s63, %d', dst, g)
    a.e('s_and_b32 s%d, s%d, 7', dst, dst)
    a.e('s_lshl_b32 s%d, s%d, 12', dst, dst)
    a.e('s_add_u32 s%d, s%d, s50', dst, dst)


a.e('v_lshrrev_b32 v5, 4, v2')
a.e('v_bfe_u32 v6, v2, 2, 2')
a.e('v_lshl_add_u32 v8, v5, 2, v6')
a.e('v_bfe_u32 v6, v8, 1, 2')
a.e('v_lshlrev_b32 v8, 7, v8')
a.e('v_and_b32 v5, 3, v2')
a.e('v_lshl_add_u32 v8, v5, 3, v8')
a.e('s_lshl_b32 s66, s45, 16')
a.e('s_lshl_b32 s67, s63, 13')
a.e('s_add_u32 s66, s66, s67')
a.e('v_add_u32 v8, s66, v8')
for cb in range(4):
    a.e('v_xor_b32 v5, %d, v6', cb)
    a.e('v_lshl_add_u32 v%d, v5, 5, v8', VW + cb)
for r in range(32):
    a.e('v_mov_b32 v%d, 0', AC2 + r)
H2D = E('H2D', 0)
if H2D:
    a.e('s_sleep %d', H2D)
for g in range(2):
    o_soff(g, 66)
    o_loads(g)
a.vm_wait('wo', 'lgkmcnt(0)')
a.e('s_barrier')
stamp(9)
a.vm_wait('xo')
a.e('v_sub_f32 v%d, 1.0, v%d', OM, GR)
a.e('v_cvt_pk_bf16_f32 v%d, 0, v%d', OM, OM)
for q in range(8):
    a.e('v_lshlrev_b32 v%d, 16, v%d', T2 + 2 * q, XO + q)
    a.e('v_and_b32 v%d, 0xffff0000, v%d', T2 + 2 * q + 1, XO + q)
for r in range(16):
    a.e('v_mul_f32 v%d, v%d, v%d', T2 + r, T2 + r, OM)
for r in range(16):
    a.e('v_cvt_pk_bf16_f32 v%d, 0, v%d', T2 + r, T2 + r)


def wo_reads(hd):
    hh = hd & 1
    return ['ds_read_b64_tr_b16 %s, v%d offset:%d' % (vr(WOF + 16 * (hd & 1) + 4 * cb + 2 * tt, 2), VW + cb, hh * 4096 + tt * 2048)
            for cb in range(4) for tt in range(2)]


emit(wo_reads(0))
YG = E('YG', 4)
a.e('s_lshr_b32 s66, s%d, 7', sIDX)
a.e('s_cmp_eq_u32 s66, s6')
a.e('s_cselect_b32 s51, 1, 0')
for g in range(8):
    if g + 2 < 8:
        o_soff(g + 2, 66)
        o_loads(g + 2)
    if g == YG:
        a.e('s_cmp_eq_u32 s51, 0')
        a.e('s_cbranch_scc1 Q_ny0')
        a.e('s_lshl_b32 s64, s7, 14')
        a.e('s_lshl_b32 s66, s3, 11')
        a.e('s_add_u32 s64, s64, s66')
        a.e('s_add_u32 s64, s64, %d', WS_YP)
        for q in range(2):
            a.vm_uncounted('buffer_load_dwordx4 %s, v%d, %s, s64 offen offset:%d' % (vr(YL + 4 * q, 4), VL16, WSR, q * 1024) + RD)
        a.e('Q_ny0:')
    a.vm_wait('o%d' % g)
    b = OB + 16 * (g % 3)
    a.e('Q_chk%d:', g)
    a.e('v_max3_u32 v5, v%d, v%d, v%d', b, b + 1, b + 2)
    for q in range(3, 15, 2):
        a.e('v_max3_u32 v5, v5, v%d, v%d', b + q, b + q + 1)
    a.e('v_max_u32 v5, v5, v%d', b + 15)
    a.e('v_cmp_eq_u32 vcc, -1, v5')
    a.e('s_cbranch_vccnz Q_rt%d', g)
    a.e('Q_go%d:', g)
    if g == 0:
        stamp(1)
    for hh in range(2):
        hd = 2 * g + hh
        R = wo_reads(hd + 1) if hd + 1 < 16 else []
        pre = []
        if hh == 1 and R:
            pre = ['s_add_u32 s48, s48, 1', 's_and_b32 s48, s48, 7', 's_cmp_eq_u32 s48, 0', 's_movk_i32 s66, 8192',
                   's_cselect_b32 s66, %d, s66' % (-57344 & 0xffffffff)] + ['v_add_u32 v%d, s66, v%d' % (VW + cb, VW + cb) for cb in range(4)]
        k = 0
        for cb in range(4):
            a.e('s_waitcnt lgkmcnt(%d)', 6 - 2 * cb + k)
            for sb in range(2):
                a.e(mfma(AC2 + 16 * sb + 4 * cb, WOF + 16 * hh + 4 * cb, b + 8 * hh + 4 * sb))
                if cb == 0 and sb == 0:
                    emit(pre)
                if cb + sb > 0 and k < len(R):
                    nrd = 2 if (cb == 3 and sb == 1) else 1
                    for _ in range(nrd):
                        a.e(R[k]); k += 1
        assert k == len(R)
stamp(10)
a.e('s_cmp_eq_u32 s51, 0')
a.e('s_cbranch_scc1 Q_ny1')
a.e('s_mov_b32 s59, 0')
a.e('Q_ychk:')
a.e('s_waitcnt vmcnt(0)')
a.e('v_max3_u32 v5, v%d, v%d, v%d', YL, YL + 1, YL + 2)
a.e('v_max3_u32 v5, v5, v%d, v%d', YL + 3, YL + 4)
a.e('v_max3_u32 v5, v5, v%d, v%d', YL + 5, YL + 6)
a.e('v_max_u32 v5, v5, v%d', YL + 7)
a.e('v_cmp_eq_u32 vcc, -1, v5')
a.e('s_cbranch_vccz Q_yok')
a.e('s_add_u32 s59, s59, 1')
a.e('s_cmp_ge_u32 s59, %d', SPIN)
a.e('s_cbranch_scc1 Q_yok')
a.e('s_sleep 4')
for q in range(2):
    a.e('buffer_load_dwordx4 %s, v%d, %s, s64 offen offset:%d' % (vr(YL + 4 * q, 4), VL16, WSR, q * 1024) + RD)
a.e('s_branch Q_ychk')
a.e('Q_yok:')
for q in range(4):
    a.e('v_add_f32 v%d, v%d, v%d', YL + q, YL + q, YL + 4 + q)
nop(2)
for q in range(2):
    a.e('v_permlane16_swap_b32 v%d, v%d', YL + q, YL + 2 + q)
for q in range(2):
    a.e('v_add_f32 v%d, v%d, v%d', YL + q, YL + q, YL + 2 + q)
a.e('v_and_b32 v5, 15, v2')
a.e('v_lshlrev_b32 v5, 4, v5')
a.e('v_permlane32_swap_b32 v%d, v%d', YL, YL + 1)
a.e('v_bfe_u32 v6, v2, 4, 1')
a.e('v_lshl_add_u32 v5, v6, 3, v5')
a.e('v_lshrrev_b32 v6, 5, v2')
a.e('v_lshl_add_u32 v5, v6, 2, v5')
a.e('v_add_f32 v%d, v%d, v%d', YL, YL, YL + 1)
a.e('s_lshl_b32 s66, s3, 8')
a.e('s_add_u32 s66, s66, %d', L_YS)
a.e('v_add_u32 v5, s66, v5')
a.e('ds_write_b32 v5, v%d', YL)
a.e('Q_ny1:')
a.e('s_lshl_b32 s66, s3, 12')
a.e('v_add_u32 v5, s66, v%d', VL16)
a.e('s_xor_b32 s66, s66, 16384')
a.e('v_add_u32 v6, s66, v%d', VL16)
a.e('s_waitcnt lgkmcnt(0)')
a.e('s_barrier')
a.e('s_cmp_eq_u32 s45, 0')
a.e('s_cbranch_scc1 Q_x0')
for q in range(4):
    a.e('ds_write_b128 v5, %s offset:%d', vr(AC2 + 4 * q, 4), q * 1024)
for r in range(16):
    a.e('v_mov_b32 v%d, v%d', AC2 + r, AC2 + 16 + r)
a.e('s_branch Q_x1')
a.e('Q_x0:')
for q in range(4):
    a.e('ds_write_b128 v5, %s offset:%d', vr(AC2 + 16 + 4 * q, 4), q * 1024)
a.e('Q_x1:')
a.e('s_cmp_eq_u32 s51, 0')
a.e('s_cbranch_scc1 Q_ny2')
a.e('s_cmp_lg_u32 s3, 0')
a.e('s_cbranch_scc1 Q_ny2')
a.e('v_lshlrev_b32 v8, 2, v2')
a.e('v_add_u32 v8, %d, v8', L_YS)
for w in range(8):
    a.e('ds_read_b32 v%d, v8 offset:%d', YL + w, w * 256)
a.e('s_and_b32 s66, s%d, 0xffff0000', sKEY)
a.e('s_xor_b32 s67, s66, 0x80000000')
a.e('s_not_b32 s68, s66')
a.e('s_and_b32 s68, s68, 0xffff0000')
a.e('s_cmp_ge_u32 s66, 0x80000000')
a.e('s_cselect_b32 s66, s67, s68')
a.e('v_mov_b32 v40, s66')
a.e('v_mul_f32 v40, s%d, v40', sL2E)
a.e('v_exp_f32 v40, -v40')
nop(1)
a.e('v_add_f32 v40, 1.0, v40')
a.e('v_rcp_f32 v40, v40')
nop(1)
a.e('v_cvt_pk_bf16_f32 v40, 0, v40')
a.e('s_waitcnt lgkmcnt(0)')
for w in range(1, 8):
    a.e('v_add_f32 v%d, v%d, v%d', YL, YL, YL + w)
a.e('v_cvt_pk_bf16_f32 v%d, 0, v%d', YL, YL)
a.e('v_mul_f32 v%d, v%d, v40', YL, YL)
a.e('v_cvt_pk_bf16_f32 v%d, 0, v%d', YL, YL)
a.e('ds_write_b32 v8, v%d offset:2048', YL)
a.e('Q_ny2:')
a.e('s_waitcnt lgkmcnt(0)')
a.e('s_barrier')
for q in range(4):
    a.e('ds_read_b128 %s, v6 offset:%d', vr(AC2 + 16 + 4 * q, 4), q * 1024)
a.e('v_cmp_eq_u32 vcc, s%d, v%d', sIDX, VROW)
a.e('s_and_saveexec_b64 s[68:69], vcc')
a.e('s_cbranch_execz Q_nr')
a.e('v_bfe_u32 v8, v2, 4, 1')
a.e('v_lshlrev_b32 v8, 6, v8')
a.e('v_lshrrev_b32 v5, 5, v2')
a.e('v_lshl_add_u32 v8, v5, 5, v8')
a.e('v_add_u32 v8, %d, v8', L_YS + 2048)
for q in range(4):
    a.e('ds_read_b128 %s, v8 offset:%d', vr(40 + 4 * q, 4), (q >> 1) * 128 + (q & 1) * 16)
a.e('s_waitcnt lgkmcnt(0)')
for q in range(8):
    a.e('v_lshlrev_b32 v%d, 16, v%d', T2 + 2 * q, XO + q)
    a.e('v_and_b32 v%d, 0xffff0000, v%d', T2 + 2 * q + 1, XO + q)
for r in range(16):
    a.e('v_add_f32 v%d, v%d, v%d', T2 + r, T2 + r, 40 + r)
    a.e('v_cvt_pk_bf16_f32 v%d, 0, v%d', T2 + r, T2 + r)
    a.e('v_mul_f32 v%d, v%d, v%d', T2 + r, T2 + r, OM)
    a.e('v_cvt_pk_bf16_f32 v%d, 0, v%d', T2 + r, T2 + r)
a.e('Q_nr:')
a.e('s_mov_b64 exec, s[68:69]')
a.e('v_mov_b32 v%d, v%d', GR + 2, GR)
a.e('v_mov_b32 v%d, v%d', GR + 3, GR)
AP = 40
for q in range(4):
    a.e('s_waitcnt lgkmcnt(%d)', 3 - q)
    for h in range(2):
        r = AC2 + 4 * q + 2 * h
        a.e('v_pk_add_f32 %s, %s, %s', vr(r, 2), vr(r, 2), vr(r + 16, 2))
    for h in range(2):
        r = AC2 + 4 * q + 2 * h
        a.e('v_cvt_pk_bf16_f32 v%d, v%d, v%d', AP + 2 * q + h, r, r + 1)
nop(1)
for k in range(2):
    for h in range(2):
        a.e('v_permlane16_swap_b32 v%d, v%d', AP + 4 * k + h, AP + 4 * k + 2 + h)
for k in range(2):
    F = AC2 + 8 * k
    for q in range(4):
        a.e('v_lshlrev_b32 v%d, 16, v%d', F + 2 * q, AP + 4 * k + q)
        a.e('v_and_b32 v%d, 0xffff0000, v%d', F + 2 * q + 1, AP + 4 * k + q)
    for q in range(4):
        a.e('v_pk_mul_f32 %s, %s, %s', vr(F + 2 * q, 2), vr(F + 2 * q, 2), vr(GR + 2, 2))
    for r in range(8):
        a.e('v_cvt_pk_bf16_f32 v%d, 0, v%d', F + r, F + r)
    for q in range(4):
        a.e('v_pk_add_f32 %s, %s, %s', vr(F + 2 * q, 2), vr(F + 2 * q, 2), vr(T2 + 8 * k + 2 * q, 2))
    for q in range(4):
        a.e('v_cvt_pk_bf16_f32 v%d, v%d, v%d', 48 + 4 * k + q, F + 2 * q, F + 2 * q + 1)
    a.e('buffer_store_dwordx4 %s, v%d, %s, 0 offen offset:%d nt', vr(48 + 4 * k, 4), VX, sr(S_OUT, 4), 64 * k)
if STAMPS:
    a.e('s_waitcnt vmcnt(0)')
    a.e('s_memrealtime s[64:65]')
    a.e('s_waitcnt lgkmcnt(0)')
    a.e('s_lshl_b32 s66, s2, 3')
    a.e('s_add_u32 s66, s66, s3')
    a.e('s_lshl_b32 s66, s66, 6')
    a.e('s_add_u32 s66, s66, %d', WS_ST)
    a.e('v_mov_b32 v1, s66')
    a.e('s_mov_b64 exec, 1')
    for i in range(12):
        a.e('v_mov_b32 v2, s%d', 80 + 2 * i if i < 11 else 64)
        a.e('buffer_store_dword v2, v1, %s, 0 offen offset:%d', WSR, 4 * i)
        a.e('s_nop 1')
a.e('END:')
a.e('s_endpgm')
for g in range(8):
    b = OB + 16 * (g % 3)
    a.e('Q_rt%d:', g)
    a.e('s_mov_b32 s59, 0')
    o_soff(g, 67)
    a.e('Q_rl%d:', g)
    a.e('s_waitcnt vmcnt(0)')
    a.e('s_add_u32 s59, s59, 1')
    a.e('s_cmp_ge_u32 s59, %d', SPIN)
    a.e('s_cbranch_scc1 Q_rd%d', g)
    a.e('s_sleep %d', E('OSL', 1))
    o_loads(g, False, 67)
    a.e('s_waitcnt vmcnt(0)')
    a.e('v_max3_u32 v5, v%d, v%d, v%d', b, b + 1, b + 2)
    for q in range(3, 15, 2):
        a.e('v_max3_u32 v5, v5, v%d, v%d', b + q, b + q + 1)
    a.e('v_max_u32 v5, v5, v%d', b + 15)
    a.e('v_cmp_eq_u32 vcc, -1, v5')
    a.e('s_cbranch_vccnz Q_rl%d', g)
    a.e('Q_rd%d:', g)
    for g2 in range(g + 1, min(g + 3, 8)):
        o_soff(g2, 67)
        o_loads(g2, False, 67)
    a.e('s_branch Q_go%d', g)
a.e('CODE_END:')

hdr = open(os.path.join(os.path.dirname(os.path.abspath(__file__)), '..', NAME + '.s.ref')).read().split('; Override launch')[0]
out = hdr + '; @launch grid=(256,1,1) block=(512,1,1) lds=%d\n' % LDS + a.text() + '.section .rodata,"a"\n' + kd(kn, 256)
path = sys.argv[1] if len(sys.argv) > 1 else os.path.join(os.path.dirname(os.path.abspath(__file__)), '..', NAME + '.s')
open(path, 'w').write(out)
```

```python
import sys, os
sys.path.insert(0, os.path.dirname(os.path.abspath(__file__)))
from asmlib import *

NAME = 'gated_mix__linear_attn_block__moe_arch_mod__prompt'
E = lambda k, d: int(os.environ.get(k, str(d)))
EXP = os.environ.get('EXP', '')
STAMPS = E('STAMPS', 0)

WS_O = 0
WS_KV = 4 << 20
WS_Z = WS_KV + (1 << 20)
WS_HU = WS_Z + 65536
WS_YP = WS_HU + 16 * 32768
WS_G = WS_YP + 16 * 64 * 256
WS_KEY = WS_G + 32768
WS_ST = 16 << 20
WS_BYTES = 268435456
WT = os.environ.get('WT', ' sc0 sc1')
RD1 = os.environ.get('RD1', ' sc1')
RD = ' sc1'

SLOT = 40960
BQ, BK, BV = 16384, 24576, 32768
S3 = 3 * SLOT
MISC = S3 + 32768
L_FLG = MISC
L_HS = MISC + 64
L_YS = MISC + 64 + 1280
L_KVF = MISC + 4096 - 256
L_ZF = L_KVF
L_KF = L_KVF + 256
LDS = 163840
assert L_YS + 2304 <= L_KVF and L_KF + 4096 <= LDS
L_KST = 0
L_QH = S3 + 16384
L_Y4 = S3 + 24576
L_VST = SLOT + BK

S_X, S_W, S_WS, S_WO, S_WV, S_MW, S_WD, S_OUT, S_DBG = 8, 12, 16, 20, 24, 28, 32, 36, 40
WSR = sr(S_WS, 4)
sW, sRT, sCT, sRT2, sCT2, sHW, sHALF, sL2E, sEPS = 3, 4, 5, 6, 7, 44, 45, 46, 47
sKEY, sIDX, sPEND, sSLO, sSHI, sCG, sKQ = 74, 75, 76, 77, 78, 79, 73
sROT = 76
LOG2E = 0x3fb8aa3b
EPS6 = 0x358637bd
SPIN = E("SPIN", 200000)

a = Asm()
nstamp = [0]


def stamp(idx, lvl=1):
    if STAMPS == lvl or (STAMPS and idx == 0):
        a.e('s_memrealtime s[%d:%d]', 80 + 2 * idx, 81 + 2 * idx)


def spin_rec(site):
    if not E('SOD', 0):
        return
    lab = a.label('SO')
    a.e('s_cbranch_scc0 %s', lab)
    a.e('v_mov_b32 v254, %d', 4 * site)
    a.e('v_mov_b32 v253, s2')
    a.e('v_add_u32 v253, 1000, v253')
    a.e('buffer_store_dword v253, v254, s[40:43], 0 offen sc0 sc1')
    a.e('s_cmp_eq_u32 s2, s2')
    a.e('%s:', lab)


def nop(n):
    while n > 0:
        k = min(n, 16)
        a.e('s_nop %d', k - 1)
        n -= k


def srd2(d, nbytes):
    a.e('s_mov_b32 s%d, 0x%x', d + 2, nbytes)
    a.e('s_mov_b32 s%d, 0x00020000', d + 3)


def mfma(d, x, y, c=None):
    return 'v_mfma_f32_16x16x32_bf16 %s, %s, %s, %s' % (vr(d, 4), vr(x, 4), vr(y, 4), vr(d, 4) if c is None else c)


def phi_packed(src, dst, n, t, mn=None):
    L = []
    for j in range(n):
        t0 = t + 4 * (j & 1)
        e0 = t0 + 2
        L += ['v_lshlrev_b32 v%d, 16, v%d' % (t0, src + j),
              'v_and_b32 v%d, 0xffff0000, v%d' % (t0 + 1, src + j),
              'v_pk_mul_f32 %s, %s, s[70:71]' % (vr(e0, 2), vr(t0, 2)),
              'v_pk_add_f32 %s, %s, 1.0 op_sel_hi:[1,0]' % (vr(t0, 2), vr(t0, 2)),
              'v_exp_f32 v%d, v%d clamp' % (e0, e0),
              'v_exp_f32 v%d, v%d clamp' % (e0 + 1, e0 + 1),
              'v_max_f32 v%d, v%d, v%d' % (t0, t0, e0),
              'v_max_f32 v%d, v%d, v%d' % (t0 + 1, t0 + 1, e0 + 1)]
        if mn is not None:
            L.append(('v_min_f32 v%d, v%d, v%d' % (mn, t0, t0 + 1)) if j == 0 else ('v_min3_f32 v%d, v%d, v%d, v%d' % (mn, t0, t0 + 1, mn)))
        L.append('v_cvt_pk_bf16_f32 v%d, v%d, v%d' % (dst + j, t0, t0 + 1))
    out = []
    per = len(L) // n
    for j in range(0, n, 2):
        A, B = L[j * per:(j + 1) * per], L[(j + 1) * per:(j + 2) * per]
        out += A[:6] + B[:6] + A[6:] + B[6:]
    return out


def phi_eps(dst, n, t):
    for j in range(n):
        a.e('v_lshlrev_b32 v%d, 16, v%d', t, dst + j)
        a.e('v_and_b32 v%d, 0xffff0000, v%d', t + 1, dst + j)
        a.e('v_add_f32 v%d, s%d, v%d', t, sEPS, t)
        a.e('v_add_f32 v%d, s%d, v%d', t + 1, sEPS, t + 1)
        a.e('v_cvt_pk_bf16_f32 v%d, v%d, v%d', dst + j, t, t + 1)


def emit(L):
    for x in L:
        a.e(x)


def wave_reduce(regs, op, stmp):
    pats = ['quad_perm:[1,0,3,2]', 'quad_perm:[2,3,0,1]', 'row_half_mirror', 'row_mirror']
    nop(2)
    for p in pats:
        if len(regs) < 3:
            nop(2)
        for r in regs:
            a.e('%s_dpp v%d, v%d, v%d %s row_mask:0xf bank_mask:0xf', op, r, r, r, p)
    nop(2)
    for r in regs:
        for q in range(4):
            a.e('v_readlane_b32 s%d, v%d, %d', stmp + q, r, 16 * q)
        nop(2)
        a.e('v_mov_b32 v%d, s%d', r, stmp)
        for q in range(1, 4):
            a.e('%s v%d, s%d, v%d', op, r, stmp + q, r)


def red4(r):
    nop(2)
    a.e('v_permlane32_swap_b32 v%d, v%d', r, r + 1)
    a.e('v_permlane32_swap_b32 v%d, v%d', r + 2, r + 3)
    a.e('v_add_f32 v%d, v%d, v%d', r, r, r + 1)
    a.e('v_add_f32 v%d, v%d, v%d', r + 2, r + 2, r + 3)
    nop(2)
    a.e('v_permlane16_swap_b32 v%d, v%d', r, r + 2)
    a.e('v_add_f32 v%d, v%d, v%d', r, r, r + 2)
    for p in ['quad_perm:[1,0,3,2]', 'quad_perm:[2,3,0,1]', 'row_half_mirror', 'row_mirror']:
        nop(2)
        a.e('v_add_f32_dpp v%d, v%d, v%d %s row_mask:0xf bank_mask:0xf', r, r, r, p)


def red8(acc, t, vlane):
    a.e('v_and_b32 v%d, 8, v%d', t, vlane)
    a.e('v_cmp_eq_u32 vcc, 0, v%d', t)
    nop(2)
    for j in range(4):
        a.e('v_cndmask_b32 v%d, v%d, v%d, vcc', t + j, acc + j, acc + 4 + j)
        a.e('v_cndmask_b32 v%d, v%d, v%d, vcc', acc + j, acc + 4 + j, acc + j)
    nop(1)
    for j in range(4):
        a.e('v_add_f32_dpp v%d, v%d, v%d row_ror:8 row_mask:0xf bank_mask:0xf', acc + j, t + j, acc + j)
    nop(2)
    for j in range(2):
        a.e('v_permlane16_swap_b32 v%d, v%d', acc + j, acc + 2 + j)
    for j in range(2):
        a.e('v_add_f32 v%d, v%d, v%d', acc + j, acc + j, acc + 2 + j)
    nop(2)
    a.e('v_permlane32_swap_b32 v%d, v%d', acc, acc + 1)
    a.e('v_add_f32 v%d, v%d, v%d', acc, acc, acc + 1)


def red8_col(dst, t, vlane):
    a.e('v_and_b32 v%d, 7, v%d', dst, vlane)
    a.e('v_lshlrev_b32 v%d, 5, v%d', dst, dst)
    a.e('v_bfe_u32 v%d, v%d, 3, 1', t, vlane)
    a.e('v_lshl_add_u32 v%d, v%d, 4, v%d', dst, t, dst)
    a.e('v_bfe_u32 v%d, v%d, 4, 1', t, vlane)
    a.e('v_lshl_add_u32 v%d, v%d, 3, v%d', dst, t, dst)
    a.e('v_lshrrev_b32 v%d, 5, v%d', t, vlane)
    a.e('v_lshl_add_u32 v%d, v%d, 2, v%d', dst, t, dst)


def gemv_rows(w, xp, n, acc, t, dot):
    x = xp + (n >> 1)
    L = []
    if dot:
        L.append(('v_and_b32 v%d, 0xffff, v%d' if n % 2 == 0 else 'v_lshrrev_b32 v%d, 16, v%d') % (t, x))
        L.append(('v_lshlrev_b32 v%d, 16, v%d' if n % 2 == 0 else 'v_and_b32 v%d, 0xffff0000, v%d') % (t + 1, x))
        for q in range(4):
            L.append('v_dot2_f32_bf16 v%d, v%d, v%d, v%d' % (acc + 2 * q, w + q, t, acc + 2 * q))
            L.append('v_dot2_f32_bf16 v%d, v%d, v%d, v%d' % (acc + 2 * q + 1, w + q, t + 1, acc + 2 * q + 1))
    else:
        L.append(('v_lshlrev_b32 v%d, 16, v%d' if n % 2 == 0 else 'v_and_b32 v%d, 0xffff0000, v%d') % (t, x))
        for q in range(4):
            L += ['v_lshlrev_b32 v%d, 16, v%d' % (t + 1, w + q), 'v_and_b32 v%d, 0xffff0000, v%d' % (t + 2, w + q),
                  'v_fmac_f32 v%d, v%d, v%d' % (acc + 2 * q, t + 1, t), 'v_fmac_f32 v%d, v%d, v%d' % (acc + 2 * q + 1, t + 2, t)]
    return L


kn = NAME + '_kernel'
a.e('.amdgcn_target "amdgcn-amd-amdhsa--gfx950"\n.text')
a.e('.globl %s\n.p2align 8\n.type %s,@function\n%s:' % (kn, kn, kn))
a.e('s_cmp_ge_u32 s2, 256')
a.e('s_cbranch_scc1 END')
stamp(0)
a.e('s_load_dwordx2 s[8:9], s[0:1], 0')
a.e('s_load_dwordx2 s[12:13], s[0:1], 8')
a.e('s_load_dwordx8 s[48:55], s[0:1], 32')
a.e('s_load_dwordx8 s[56:63], s[0:1], 64')
a.e('s_load_dwordx2 s[20:21], s[0:1], 16')
a.e('s_getpc_b64 s[64:65]')
a.e('PC0:')
if 'nocode' not in EXP:
    a.e('s_and_b32 s66, s2, 0xf8')
    a.e('v_and_b32 v1, 31, v0')
    a.e('v_lshl_add_u32 v1, s66, 2, v1')
    a.e('v_lshlrev_b32 v1, 6, v1')
    a.e('v_min_u32 v1, CODE_END-PC0-4, v1')
    a.vm_issue('code', 'global_load_dword v247, v1, s[64:65]')
a.e('v_lshrrev_b32 v1, 6, v0')
a.e('v_and_b32 v2, 63, v0')
a.e('s_and_b32 s64, s2, 7')
a.e('v_readfirstlane_b32 s3, v1')
a.e('s_lshr_b32 s65, s2, 3')
a.e('s_and_b32 s4, s64, 1')
a.e('s_lshl_b32 s4, s4, 3')
a.e('s_and_b32 s66, s65, 7')
a.e('s_add_u32 s4, s4, s66')
a.e('s_lshr_b32 s5, s64, 1')
a.e('s_lshl_b32 s5, s5, 2')
a.e('s_lshr_b32 s66, s65, 3')
a.e('s_add_u32 s5, s5, s66')
a.e('s_and_b32 s44, s3, 3')
a.e('s_lshr_b32 s45, s3, 2')
VOA, VOB = 4, 5
a.e('v_lshrrev_b32 v6, 3, v2')
a.e('s_lshl_b32 s66, s44, 3')
a.e('v_add_u32 v6, s66, v6')
a.e('s_lshl_b32 s66, s4, 7')
a.e('v_add_u32 v7, s66, v6')
a.e('v_lshlrev_b32 v7, 11, v7')
a.e('v_lshrrev_b32 v8, 4, v2')
a.e('s_and_b32 s67, s44, 1')
a.e('s_lshl_b32 s66, s67, 2')
a.e('v_add_u32 v9, s66, v8')
a.e('v_and_b32 v10, 7, v2')
a.e('v_xor_b32 v9, v9, v10')
a.e('v_lshl_add_u32 v%d, v9, 4, v7', VOA)
a.e('v_mul_u32_u24 v6, 6144, v6')
a.e('v_and_b32 v9, 1, v8')
a.e('v_lshlrev_b32 v9, 2, v9')
a.e('v_xor_b32 v9, v9, v10')
a.e('s_lshl_b32 s66, s67, 1')
a.e('v_xor_b32 v9, s66, v9')
a.e('v_lshl_add_u32 v6, v9, 4, v6')
a.e('s_lshl_b32 s66, s5, 7')
a.e('v_add_u32 v%d, s66, v6', VOB)
srd2(S_X, 4194304)
srd2(S_W, 6291456)
a.e('s_lshl_b32 s72, s44, 10')
a.e('s_lshl_b32 s66, s45, 13')
a.e('s_add_u32 s68, s72, s66')
a.e('s_lshl_b32 s66, s45, 12')
a.e('s_add_u32 s69, s72, s66')
RA, RX2 = E('RA', 2), E('RX2', 4)
a.e('s_and_b32 s66, s65, 7')
a.e('s_mul_i32 s%d, s66, %d', sROT, RA)
a.e('s_lshr_b32 s66, s64, 1')
a.e('s_mul_i32 s66, s66, %d', RX2)
a.e('s_add_u32 s%d, s%d, s66', sROT, sROT)


def ks_regs(stage, da, db):
    a.e('s_add_u32 s%d, s%d, %d', db, sROT, stage)
    a.e('s_and_b32 s%d, s%d, 15', db, db)
    a.e('s_lshl_b32 s%d, s%d, 7', da, db)
    a.e('s_mul_i32 s%d, s%d, 393216', db, db)


for st in range(2):
    ks_regs(st, 70, 71)
    a.e('s_lshl_b32 s66, s45, 17')
    a.e('s_add_u32 s70, s70, s66')
    a.e('s_mul_i32 s66, s45, 196608')
    a.e('s_add_u32 s71, s71, s66')
    if st == 0:
        a.e('s_waitcnt lgkmcnt(0)')
    for ty in (1, 2, 0):
        a.e('s_add_u32 m0, s69, %d', st * SLOT + BQ + ty * 8192)
        a.e('s_add_u32 s66, s71, %d', ty * 2048)
        a.vm_issue('d%d' % st, 'buffer_load_dwordx4 v%d, %s, s66 offen lds', VOB, sr(S_W, 4))
    for q in range(2):
        a.e('s_add_u32 m0, s68, %d', st * SLOT + q * 4096)
        a.e('s_add_u32 s66, s70, %d', q * 65536)
        a.vm_issue('d%d' % st, 'buffer_load_dwordx4 v%d, %s, s66 offen lds', VOA, sr(S_X, 4))
    if st == 0:
        a.e('s_barrier')
for d, b in ((S_WS, 62), (S_WD, 54), (S_OUT, 58), (S_DBG, 60)):
    a.e('s_mov_b32 s%d, s%d', d, b)
    a.e('s_mov_b32 s%d, s%d', d + 1, b + 1)
srd2(S_WS, WS_BYTES); srd2(S_WD, 7340032); srd2(S_OUT, 4194304); srd2(S_DBG, 256); srd2(S_WO, 2097152)
a.e('s_bitcmp0_b32 s44, 0')
a.e('s_cselect_b32 s24, s48, s56')
a.e('s_cselect_b32 s25, s49, s57')
srd2(S_WV, 2048)
a.e('s_bitcmp0_b32 s44, 0')
a.e('s_cselect_b32 s28, s50, s52')
a.e('s_cselect_b32 s29, s51, s53')
srd2(S_MW, 7340032)
a.e('s_lshr_b32 s66, s64, 2')
a.e('s_lshl_b32 s66, s66, 1')
a.e('s_and_b32 s67, s64, 1')
a.e('s_add_u32 s66, s66, s67')
a.e('s_lshl_b32 s67, s65, 2')
a.e('s_add_u32 s66, s66, s67')
a.e('s_add_u32 s66, s66, 96')
a.e('s_bitcmp0_b32 s64, 1')
a.e('s_cselect_b32 s67, 32, 0')
a.e('s_add_u32 s66, s66, s67')
a.e('s_cmp_lt_u32 s65, 24')
a.e('s_cselect_b32 s67, s2, s66')
a.e('s_cmp_ge_u32 s67, 224')
a.e('s_cselect_b32 s30, 0, s30')
a.e('s_cselect_b32 s34, 0, s34')
a.e('s_lshr_b32 s%d, s67, 2', sCG)
a.e('s_and_b32 s%d, s67, 3', sKQ)
a.e('s_and_b32 s6, s64, 3')
a.e('s_lshl_b32 s6, s6, 2')
a.e('s_and_b32 s66, s65, 3')
a.e('s_add_u32 s6, s6, s66')
a.e('s_lshr_b32 s7, s64, 2')
a.e('s_lshl_b32 s7, s7, 3')
a.e('s_lshr_b32 s66, s65, 2')
a.e('s_add_u32 s7, s7, s66')
a.e('s_mov_b32 s%d, 0x%x', sL2E, LOG2E)
a.e('s_mov_b32 s%d, 0x%x', sEPS, EPS6)
a.e('s_cmp_ge_u32 s3, 4')
a.e('s_cbranch_scc1 HELP')
vm_entry = list(a.vm)

OB, WOF, AC2, XO, GR, OM, T2, YL = 96, 192, 224, 144, 152, 153, 16, 32
VKV, VZ, VWO, VX, VROW, VG, SEL0 = 88, 89, 90, 91, 92, 93, 94
VL16, SEL, VPR = 9, 136, 15
PQ = 24
sM0 = 52


def post_addr(role, o=0):
    W, X, R_, G = VWO + o, VX + o, VROW + o, VG + o
    L = [
         'v_lshrrev_b32 v12, 3, v2', 's_lshl_b32 s67, s44, 3', 'v_add_u32 v12, s67, v12', 'v_lshlrev_b32 v12, 11, v12',
         'v_lshrrev_b32 v13, 4, v2', 'v_lshlrev_b32 v13, 1, v13', 'v_and_b32 v%d, 7, v2' % W, 'v_xor_b32 v13, v13, v%d' % W,
         'v_lshl_add_u32 v12, v13, 4, v12', 's_lshl_b32 s66, s7, 7', 'v_add_u32 v%d, s66, v12' % W,
         's_lshl_b32 s66, s6, 7', 's_lshl_b32 s67, s44, 5', 's_add_u32 s66, s66, s67', 's_lshl_b32 s67, s45, 4', 's_add_u32 s66, s66, s67',
         'v_and_b32 v%d, 15, v2' % R_, 'v_add_u32 v%d, s66, v%d' % (R_, R_), 'v_lshlrev_b32 v%d, 11, v%d' % (X, R_),
         'v_bfe_u32 v12, v2, 4, 1', 'v_lshl_add_u32 v%d, v12, 5, v%d' % (X, X), 'v_lshrrev_b32 v12, 5, v2',
         'v_lshl_add_u32 v%d, v12, 4, v%d' % (X, X), 's_lshl_b32 s66, s7, 7', 'v_add_u32 v%d, s66, v%d' % (X, X),
         'v_lshrrev_b32 v%d, 2, v%d' % (G, R_), 'v_lshlrev_b32 v%d, 6, v%d' % (G, G), 'v_and_b32 v12, 3, v2',
         'v_lshl_add_u32 v%d, v12, 2, v%d' % (G, G),
         's_lshl_b32 s66, s6, 1', 's_and_b32 s66, s66, %d' % E('WOO', 6), 's_lshl_b32 s67, s7, %d' % E('OSH', 2), 's_add_u32 s66, s66, s67', 's_and_b32 s66, s66, 7',
         's_lshl_b32 s%d, s66, 18' % sM0,
         's_mov_b32 s70, 0x%x' % LOG2E, 's_mov_b32 s71, 0x%x' % LOG2E,
         's_lshr_b32 s49, s44, 1', 's_and_b32 s66, s44, 1', 's_lshl_b32 s66, s66, 2', 's_lshl_b32 s67, s45, 1', 's_add_u32 s66, s66, s67',
         's_lshl_b32 s67, s4, 3', 's_add_u32 s66, s66, s67', 's_lshl_b32 s66, s66, 5', 's_lshl_b32 s67, s5, 1', 's_add_u32 s66, s66, s67',
         's_add_u32 s66, s66, s49', 's_lshl_b32 s60, s66, 10', 's_add_u32 s61, s60, 32768']
    if role == 'c':
        L += ['s_lshl_b32 s58, s5, 2', 's_add_u32 s58, s58, s44', 's_lshl_b32 s66, s58, 14', 's_add_u32 s66, s66, %d' % WS_KV,
              'v_lshlrev_b32 v12, 4, v2', 'v_add_u32 v%d, s66, v12' % (VKV + o),
              's_lshl_b32 s66, s58, 10', 's_add_u32 s66, s66, %d' % WS_Z, 'v_and_b32 v12, 15, v2', 'v_lshlrev_b32 v12, 6, v12',
              'v_lshrrev_b32 v13, 4, v2', 'v_lshl_add_u32 v12, v13, 4, v12', 'v_add_u32 v%d, s66, v12' % (VZ + o),
              's_lshr_b32 s57, s4, 3', 's_xor_b32 s57, s57, s4', 's_and_b32 s57, s57, 1',
              's_lshl_b32 s57, s57, 13',
              'v_bfe_u32 v12, v2, 2, 2', 'v_cmp_eq_u32 vcc, v12, v13', 'v_mov_b32 v13, 0x3f80',
              'v_and_b32 v12, 1, v2', 'v_lshlrev_b32 v12, 4, v12', 'v_lshlrev_b32 v12, v12, v13', 'v_cndmask_b32 v12, 0, v12, vcc',
              'v_and_b32 v13, 2, v2', 'v_cmp_eq_u32 vcc, 0, v13', 's_nop 1',
              'v_cndmask_b32 v%d, 0, v12, vcc' % (SEL0 + o), 'v_cndmask_b32 v%d, v12, 0, vcc' % (SEL0 + 1 + o)]
    return L


VAB, VBB, VA, VB = 4, 6, 8, 10
FR = [16, 56]
QA, KA, VV = 96, 128, 160
a.e('s_and_b32 s48, s3, 1')
a.e('s_lshr_b32 s49, s3, 1')
a.e('v_and_b32 v3, 15, v2')
a.e('s_lshl_b32 s66, s48, 6')
a.e('v_add_u32 v3, s66, v3')
a.e('v_lshlrev_b32 v3, 7, v3')
a.e('v_bfe_u32 v9, v2, 1, 3')
a.e('v_lshrrev_b32 v15, 4, v2')
a.e('v_xor_b32 v9, v9, v15')
for u in range(2):
    a.e('v_xor_b32 v12, %d, v9', 4 * u)
    a.e('v_lshl_add_u32 v%d, v12, 4, v3', VAB + u)
a.e('v_bfe_u32 v12, v2, 2, 2')
a.e('v_lshl_add_u32 v13, v15, 3, v12')
a.e('v_lshlrev_b32 v13, 7, v13')
a.e('v_lshrrev_b32 v12, 1, v12')
a.e('v_xor_b32 v12, s49, v12')
a.e('v_lshl_add_u32 v13, v12, 6, v13')
a.e('v_and_b32 v12, 3, v2')
a.e('v_lshl_add_u32 v13, v12, 3, v13')
a.e('v_add_u32 v13, %d, v13', BQ)
a.e('v_and_b32 v12, 1, v15')
for nb in range(2):
    a.e('v_xor_b32 v14, %d, v12', nb)
    a.e('v_lshl_add_u32 v%d, v14, 5, v13', VBB + nb)
for q in range(4):
    a.e('v_mov_b32 v%d, v%d', VA + q, VAB + q)
for r in range(96, 192):
    a.e('v_mov_b32 v%d, 0', r)
a.e('v_lshlrev_b32 v12, 2, v2')
a.e('v_and_b32 v12, 63, v12')
a.e('v_add_u32 v12, %d, v12', L_FLG)
a.e('ds_write_b32 v12, v96')
emit(post_addr('c', 160))


def accreg(i, j):
    return (QA, KA, VV)[j >> 1] + 8 * i + 4 * (j & 1)


def rdA(dst, va, i, off=0):
    return 'ds_read_b128 %s, v%d offset:%d' % (vr(dst, 4), va, off + i * 2048)


def rdB(dst, vb, j, u, tt, off=0):
    return 'ds_read_b64_tr_b16 %s, v%d offset:%d' % (vr(dst + 2 * tt, 2), vb + (j & 1), off + (j >> 1) * 8192 + u * 4096 + tt * 512)


def full_reads(u, buf):
    f = FR[buf]
    L = [rdB(f + 16, VB, 0, u, 0), rdB(f + 16, VB, 0, u, 1)] + [rdA(f + 4 * i, VA + u, i) for i in range(4)]
    for j in range(1, 6):
        L += [rdB(f + 16 + 4 * j, VB, j, u, 0), rdB(f + 16 + 4 * j, VB, j, u, 1)]
    return L


def mm(i, j, A, B):
    return mfma(accreg(i, j), B, A) if j < 2 else mfma(accreg(i, j), A, B)


def full_mfmas(buf):
    f = FR[buf]
    return [mm(i if j % 2 == 0 else 3 - i, j, f + 4 * (i if j % 2 == 0 else 3 - i), f + 16 + 4 * j) for j in range(6) for i in range(4)]


FULL_NEED = [3, 4, 5, 6] + [8] * 4 + [10] * 4 + [12] * 4 + [14] * 4 + [16] * 4
a.e('s_mov_b32 s50, 0')
a.e('s_mov_b32 s51, 0')
a.vm_wait('d0', 'lgkmcnt(0)')
a.e('s_barrier')
stamp(2)
emit(full_reads(0, 0))
a.e('.p2align 6')
a.e('LOOP:')
BARP = E('BARP', 6)
for u in range(2):
    M = full_mfmas(u)
    R = full_reads(u ^ 1, u ^ 1)
    first = 0 if u == 0 else BARP
    issued = 0; done = 0
    for i in range(24):
        if u == 1 and i == first:
            a.e('s_waitcnt vmcnt(0) lgkmcnt(0)')
            done = 16
            a.e('s_barrier')
        if FULL_NEED[i] > done:
            a.e('s_waitcnt lgkmcnt(%d)', min(15, 16 - FULL_NEED[i] + issued))
            done = FULL_NEED[i]
        a.e(M[i])
        if u == 1 and i == 0:
            a.e('s_add_u32 s50, s50, %d', SLOT)
            a.e('s_cmp_eq_u32 s50, %d', 3 * SLOT)
            a.e('s_cselect_b32 s50, 0, s50')
        if u == 1 and 1 <= i <= 4:
            a.e('v_add_u32 v%d, s50, v%d', VA + i - 1, VAB + i - 1)
        if i >= first and issued < 16:
            a.e(R[issued]); issued += 1
a.e('s_add_u32 s51, s51, 1')
a.e('s_cmp_lt_u32 s51, 13')
a.e('s_cbranch_scc1 LOOP')
stamp(3)

AR = 192
BB = [16, 24, 32]
PKT = 40
T15A, T15B = 12, 14
A13 = FR[1]


class Unit:
    def __init__(self, reads, mf, need):
        self.reads, self.mf, self.need = reads, mf, need


def kvq_unit(st, u, js, bufB, Areg, loadA):
    if st == 13:
        va, vb, off, offq = VA + u, VB, 0, 0
    elif st == 14:
        va, vb, off, offq = VA + u, VB, SLOT, SLOT
    else:
        va, vb, off, offq = T15A + u, T15B, 0, None
    R, M, need = [], [], []
    pos = {}
    for k, j in enumerate(js):
        if st == 15 and j < 2:
            vbx, o = VBB, 0
        else:
            vbx, o = vb, off
        R += [rdB(bufB + 4 * k, vbx, j, u, 0, o), rdB(bufB + 4 * k, vbx, j, u, 1, o)]
        pos[j] = len(R)
        if k == 0 and loadA:
            for i in range(4):
                R.append(rdA(Areg + 4 * i, va, i, off))
                pos['A%d' % i] = len(R)
    for k, j in enumerate(js):
        for ii in range(4):
            i = ii if k % 2 == 0 else 3 - ii
            M.append(mm(i, j, Areg + 4 * i, bufB + 4 * k))
            need.append(max(pos[j], pos.get('A%d' % i, 0)))
    return Unit(R, M, need)


units = [Unit(full_reads(0, 0), full_mfmas(0), FULL_NEED),
         kvq_unit(13, 1, [2, 3, 4, 5], A13 + 16, A13, True)]
seq = [(14, 0), (14, 1), (15, 0), (15, 1)]
nb = 0
for n, (st, u) in enumerate(seq):
    if n == 2:
        units.append(kvq_unit(13, 1, [0, 1], BB[nb % 3], A13, False)); nb += 1
    units.append(kvq_unit(st, u, [2, 3], BB[nb % 3], AR + 16 * n, True)); nb += 1
for n, (st, u) in enumerate(seq):
    units.append(kvq_unit(st, u, [4, 5], BB[nb % 3], AR + 16 * n, False)); nb += 1
for n, (st, u) in enumerate(seq):
    units.append(kvq_unit(st, u, [0, 1], BB[nb % 3], AR + 16 * n, False)); nb += 1

VST_, VFL = 3, 1


def pack_blocks(base, dst):
    L = []
    for ip in range(2):
        for b in range(2):
            for h in range(2):
                s = base + 8 * (2 * ip + h) + 4 * b
                for q in range(2):
                    L.append('v_cvt_pk_bf16_f32 v%d, v%d, v%d' % (dst + 8 * ip + 4 * b + 2 * h + q, s + 2 * q, s + 2 * q + 1))
    return L


def stage_writes(src, ldsbase):
    return [('DS', 'ds_write_b128 v%d, %s offset:%d' % (VST_, vr(src + 4 * k, 4), ldsbase + k * 1024)) for k in range(4)]


def phi_q(tag):
    emit(phi_packed(QP, PQ, 8, 32, 40))
    a.e('v_cmp_gt_f32 vcc, 0x3a800000, v40')
    a.e('s_cbranch_vccz %s', tag)
    phi_eps(PQ, 8, 32)
    a.e('%s:', tag)


def x_loads():
    for q in range(2):
        a.vm_issue('xo', 'buffer_load_dwordx4 %s, v%d, %s, 0 offen offset:%d', vr(XO + 4 * q, 4), VX, sr(S_X, 4), 64 * q)


KF, ZF, NA, DEN = 32, 40, 44, 60


def c_addr():
    a.e('s_lshl_b32 s66, s49, 11')
    a.e('s_add_u32 s66, s66, %d', L_KF)
    a.e('v_add_u32 v10, s66, v%d', VL16)
    a.e('s_lshl_b32 s66, s49, 6')
    a.e('s_add_u32 s66, s66, %d', L_ZF)
    a.e('v_lshrrev_b32 v11, 4, v2')
    a.e('v_lshlrev_b32 v11, 4, v11')
    a.e('v_add_u32 v11, s66, v11')


allrounds = [(kh, m) for m in range(8) for kh in range(2)]


def wo_pair(r):
    kh, m = r
    a.e('s_add_u32 s67, s%d, %d', sM0, m * 262144)
    a.e('s_and_b32 s67, s67, 0x1fffff')
    for hh in range(2):
        a.e('s_add_u32 m0, s72, %d', kh * 65536 + m * 8192 + hh * 4096)
        a.e('s_add_u32 s66, s67, %d', kh * 131072 + hh * 65536)
        a.vm_issue('wo', 'buffer_load_dwordx4 v%d, %s, s66 offen lds', VWO, sr(S_WO, 4))


R1 = E('R1', 4)
QP = 16

fill = {k: [] for k in range(len(units))}
fill[0] += ['v_add_u32 v%d, %d, v%d' % (T15A + u, S3, VAB + u) for u in range(2)]
fill[0] += ['v_add_u32 v%d, %d, v%d' % (T15B + n, S3 + 16384 - BK, VBB + n) for n in range(2)]
fill[0] += ['s_lshl_b32 s66, s3, 12', 'v_lshlrev_b32 v%d, 4, v2' % VST_, 'v_add_u32 v%d, s66, v%d' % (VST_, VST_),
            's_lshl_b32 s66, s3, 2', 's_add_u32 s66, s66, %d' % L_FLG, 'v_mov_b32 v%d, s66' % VFL, 'v_mov_b32 v0, 1']
PK_ = pack_blocks(KA, PKT)
kw = stage_writes(PKT, L_KST)
fill[0] += ['v_mov_b32 v%d, v%d' % (88 + q, 248 + q) for q in range(8)]
CP = ['s_setprio 3'] if E('CPRIO', 0) else []
CN = ['s_setprio 0'] if E('CPRIO', 0) else []
fill[7] += CP + ['NOP8'] + PK_[0:4] + [kw[0]] + PK_[4:8] + [kw[1]] + PK_[8:12] + [kw[2]] + PK_[12:16] + [kw[3], ('DS', 'ds_write_b32 v%d, v0' % VFL)] + CN
fill[8] += ['v_pk_max_u16 v72, v%d, v%d' % (PKT, PKT + 1)] + ['v_pk_max_u16 v72, v72, v%d' % (PKT + k) for k in range(2, 9)]
fill[9] += ['v_pk_max_u16 v72, v72, v%d' % (PKT + k) for k in range(9, 16)] + ['v_add_u32 v%d, %d, v%d' % (VST_, L_VST, VST_)]
fill[10] += ['v_lshrrev_b32 v73, 16, v72', 'v_and_b32 v72, 0xffff, v72', 'v_max_u32 v72, v72, v73',
             'v_cmp_lt_u32 vcc, 0xc0db, v72', 's_cmp_lg_u64 vcc, 0', 's_cselect_b32 s66, 2, 1', 'v_mov_b32 v0, s66']
PV_ = pack_blocks(VV, PKT)
vw = stage_writes(PKT, 0)
fill[11] += CP + ['NOP8'] + PV_[0:4] + [vw[0]] + PV_[4:8] + [vw[1]] + PV_[8:12] + [vw[2]] + PV_[12:16] + [vw[3], ('DS', 'ds_write_b32 v%d, v0 offset:16' % VFL)] + CN
fill[12] += ['v_lshlrev_b32 v%d, 4, v2' % VL16] + ['v_mov_b32 v%d, 0' % (SEL + q) for q in (0, 1, 4, 5)] + ['v_mov_b32 v%d, v%d' % (SEL + 2 + q, SEL0 + q) for q in range(2)]
WOC = E('WOC', -1)
if WOC >= 0:
    fill[WOC - 1] += ['s_and_b32 s53, s2, 0xf8', 's_lshl_b32 s53, s53, 2', 's_lshl_b32 s67, s44, 3', 's_add_u32 s53, s53, s67', 's_lshl_b32 s53, s53, 11',
                      's_lshr_b32 s67, s7, 3', 's_lshl_b32 s67, s67, 10', 's_add_u32 s53, s53, s67', 'v_lshlrev_b32 v77, 4, v2']
    WPU = E('WPU', 2)
    for q in range(8):
        fill[WOC + q // WPU] += ['buffer_load_dwordx4 v[80:83], v77, s[20:23], s53 offen offset:%d' % ((q & 1) * 2048)] + (['s_add_u32 s53, s53, 4096'] if q & 1 else [])
if E('XG', -2) == -2:
    fill[12] += ['buffer_load_dwordx4 %s, v%d, s[8:11], 0 offen offset:%d' % (vr(XO + 4 * q, 4), VX, 64 * q) for q in range(2)]
fill[13] += ['v_mov_b32 v76, %d' % (L_FLG + 16)]
fill[14] += [('DS', 'ds_read_b128 v[72:75], v76')]
barrier_before_reads = {2: 'b13', 5: 'b14'}

dsq = [('R', 0, k) for k in range(16)]
for k, U in enumerate(units):
    nxt = units[k + 1] if k + 1 < len(units) else None
    R = list(nxt.reads) if nxt else []
    F = list(fill[k])
    n = len(U.mf)
    rstart = 0
    if k + 1 in barrier_before_reads:
        rstart = 2 if n <= 8 else n - 10
    ri = 0
    for i in range(n):
        if k + 1 in barrier_before_reads and i == rstart:
            stamp(1 if k == 1 else 3, 3)
            a.e('s_barrier')
            stamp(2 if k == 1 else 4, 3)
        pos = [q for q, x in enumerate(dsq) if x[0] == 'R' and x[1] == k and x[2] < U.need[i]]
        if pos:
            cnt = len(dsq) - 1 - max(pos)
            a.e('s_waitcnt lgkmcnt(%d)', min(15, cnt))
            dsq = dsq[max(pos) + 1:]
        a.e(U.mf[i])
        left = n - i
        nr = 0
        if i >= rstart:
            want = -(-(len(R) - ri) // max(1, left - 2)) if len(R) - ri > 0 else 0
            nr = min(len(R) - ri, max(want, 1 if len(R) - ri > 0 else 0), 2)
        for _ in range(nr):
            a.e(R[ri]); dsq.append(('R', k + 1, ri)); ri += 1
        nf = -(-len(F) // left)
        for _ in range(nf):
            f = F.pop(0)
            if f == 'NOP8':
                nop(6)
            elif isinstance(f, tuple):
                a.e(f[1]); dsq.append(('W', k, 0))
            else:
                a.e(f)
    assert ri == len(R) and not F, (k, ri, len(R), F)
    if k in (0, 6, 7, 10, 11, 14):
        stamp({0: 5, 6: 6, 7: 7, 10: 8, 11: 9, 14: 10}[k], 3)
stamp(4)
nop(8)
for sb in range(4):
    dst = QP + 4 * sb if sb < 2 else PKT + 4 * (sb - 2)
    for db in range(2):
        for q in range(2):
            s = QA + 8 * sb + 4 * db + 2 * q
            a.e('v_cvt_pk_bf16_f32 v%d, v%d, v%d', dst + 2 * db + q, s, s + 1)
a.e('s_lshl_b32 s66, s3, 11')
a.e('s_add_u32 s66, s66, %d', L_QH)
a.e('v_lshlrev_b32 v3, 4, v2')
a.e('v_add_u32 v3, s66, v3')
a.e('C_qw:')
a.e('s_waitcnt lgkmcnt(0)')
a.e('v_min_u32 v72, v72, v73')
a.e('v_min3_u32 v72, v72, v74, v75')
a.e('v_cmp_eq_u32 vcc, 0, v72')
a.e('s_cbranch_vccz C_qg')
a.e('ds_read_b128 v[72:75], v76')
a.e('s_branch C_qw')
a.e('C_qg:')
a.e('ds_write_b128 v3, %s', vr(PKT, 4))
a.e('ds_write_b128 v3, %s offset:1024', vr(PKT + 4, 4))
a.e('s_waitcnt lgkmcnt(0)')
a.e('s_barrier')
a.vm = []
stamp(5)
stamp(4, 6)
KB, KACC, ZB, PRF = 160, 224, 232, 236
phi_q('P_qd')
c_addr()
H1D = E('H1D', 8)
if H1D:
    a.e('s_sleep %d', H1D)
stamp(6)


def h1_issue(i, counted):
    if i < 16:
        a.e('s_xor_b32 s66, s57, %d', (i >> 2) * 4096)
        ins = 'buffer_load_dwordx4 %s, v%d, %s, s66 offen offset:%d' % (vr(KB + 4 * i, 4), VKV, WSR, (i & 3) * 1024) + (RD1 if counted else RD)
    elif i == 16:
        ins = 'buffer_load_dwordx4 %s, v%d, %s, 0 offen' % (vr(ZB, 4), VZ, WSR) + RD
    else:
        ins = 'buffer_load_dword v%d, v%d, %s, 0 offen' % (PRF, VPR, WSR) + RD
    if counted:
        a.vm_issue('kv%d' % i, ins)
    else:
        a.vm_uncounted(ins)


def h1_guarded_issue(i, tag):
    a.e('s_bitcmp1_b32 s%d, %d', sPEND, i)
    a.e('s_cbranch_scc0 %s', tag)
    h1_issue(i, False)
    a.e('%s:', tag)


def h1_max(i, first=False):
    b = KB + 4 * i if i < 16 else ZB
    if first:
        a.e('v_max_u32 v14, v%d, v%d', b, b + 1)
    else:
        a.e('v_max3_u32 v14, v14, v%d, v%d', b, b + 1)
    a.e('v_max3_u32 v14, v14, v%d, v%d', b + 2, b + 3)


def h1_acc(i):
    for q in range(2):
        a.e(mfma(KACC + 4 * q, SEL + 2 - 2 * q, KB + 4 * i, '0' if i == 0 else None))


a.e('s_lshr_b32 s66, s44, 1')
a.e('s_lshl_b32 s67, s66, 11')
a.e('s_lshl_b32 s66, s66, 6')
a.e('s_and_b32 s59, s44, 1')
a.e('s_lshl_b32 s59, s59, 3')
a.e('s_add_u32 s66, s66, s59')
a.e('s_add_u32 s67, s67, s59')
a.e('s_add_u32 s66, s66, %d', L_ZF)
a.e('s_add_u32 s67, s67, %d', L_KF)
a.e('v_add_u32 v12, s67, v%d', VL16)
a.e('v_lshrrev_b32 v13, 4, v2')
a.e('v_lshlrev_b32 v13, 4, v13')
a.e('v_add_u32 v13, s66, v13')
H1W = E('H1W', 8)
for i in range(H1W):
    h1_issue(i, True)
if E('H1E', 0):
    a.e('s_sleep %d', E('H1E', 0))
stamp(5, 6)
order = list(range(16)) + [16]
for k, i in enumerate(order):
    if k + H1W < 17:
        h1_issue(order[k + H1W], True)
        if k + H1W == 16 and E('R2', 0):
            a.e('ds_write_b32 v%d, v0 offset:48', VFL)
    a.vm_wait('kv%d' % i)
    if k == 0:
        stamp(6, 6)
    h1_max(i, k == 0)
    if i < 16:
        h1_acc(i)
a.e('v_cmp_eq_u32 vcc, -1, v14')
stamp(3, 6)
a.e('s_cbranch_vccnz P_slow')
a.e('P_h1ok:')
for p in ['quad_perm:[1,0,3,2]', 'quad_perm:[2,3,0,1]', 'row_half_mirror', 'row_mirror']:
    for r in range(4):
        a.e('v_add_f32_dpp v%d, v%d, v%d %s row_mask:0xf bank_mask:0xf', ZB + r, ZB + r, ZB + r, p)
for q in range(4):
    a.e('v_cvt_pk_bf16_f32 v%d, v%d, v%d', KACC + q, KACC + 2 * q, KACC + 2 * q + 1)
a.e('ds_write_b64 v12, %s', vr(KACC, 2))
a.e('ds_write_b64 v12, %s offset:1024', vr(KACC + 2, 2))
a.e('v_cvt_pk_bf16_f32 v%d, v%d, v%d', ZB, ZB, ZB + 1)
a.e('v_cvt_pk_bf16_f32 v%d, v%d, v%d', ZB + 1, ZB + 2, ZB + 3)
a.e('ds_write_b64 v13, %s', vr(ZB, 2))
a.e('s_branch POST')
a.e('P_slow:')
a.e('s_mov_b32 s59, 0')
a.e('P_retry:')
a.e('s_mov_b32 s%d, 0', sPEND)
for i in range(17):
    h1_max(i, True)
    a.e('v_cmp_eq_u32 vcc, -1, v14')
    a.e('s_cbranch_vccz P_rc%d', i)
    h1_issue(i, False)
    a.e('s_mov_b32 s%d, 1', sPEND)
    a.e('P_rc%d:', i)
a.e('s_add_u32 s59, s59, 1')
a.e('s_cmp_ge_u32 s59, %d', SPIN)
spin_rec(1)
a.e('s_cselect_b32 s%d, 0, s%d', sPEND, sPEND)
a.e('s_waitcnt vmcnt(0)')
a.e('s_cmp_lg_u32 s%d, 0', sPEND)
a.e('s_cbranch_scc1 P_retry')
for i in range(16):
    h1_acc(i)
a.e('s_branch P_h1ok')

a.e('HELP:')
XR = 16
WVR = 48
GWF = 56
GACC = 64
TT = 72
XS = 80
WG = 96
WD = 160
HUB = 80
VMW, VMD = 6, 7
a.e('v_lshlrev_b32 v%d, 4, v2', VL16)
a.e('s_lshl_b32 s56, s5, 2')
a.e('s_add_u32 s56, s56, s44')
a.e('s_lshl_b32 s53, s56, 10')
a.e('s_lshl_b32 s66, s4, 6')
a.e('s_add_u32 s53, s53, s66')
a.e('s_add_u32 s53, s53, %d', WS_Z)
a.e('s_lshl_b32 s56, s56, 4')
a.e('s_add_u32 s56, s56, s4')
a.e('s_lshl_b32 s56, s56, 10')
a.e('s_add_u32 s56, s56, %d', WS_KV)
a.e('s_lshl_b32 s55, s%d, 2', sKQ)
a.e('s_add_u32 s55, s55, s44')
a.e('s_lshl_b32 s55, s55, 6')
a.e('s_add_u32 s55, s55, s%d', sCG)
a.e('s_lshl_b32 s55, s55, 8')
a.e('s_add_u32 s55, s55, %d', WS_YP)
PB = E('PB', 2)
PS = E('PS', 4)
a.e('s_cmp_ge_u32 s44, 2')
a.e('s_cbranch_scc1 WORK')

def w1_loads():
    a.e('v_lshrrev_b32 v10, 5, v2')
    a.e('v_and_b32 v11, 31, v2')
    a.e('v_lshlrev_b32 v12, 3, v10')
    a.e('s_lshl_b32 s66, s%d, 6', sCG)
    a.e('s_lshl_b32 s67, s44, 4')
    a.e('s_add_u32 s66, s66, s67')
    a.e('v_add_u32 v12, s66, v12')
    a.e('v_lshlrev_b32 v12, 11, v12')
    a.e('v_lshl_add_u32 v12, v11, 4, v12')
    a.e('s_lshl_b32 s66, s%d, 9', sKQ)
    a.e('v_add_u32 v%d, s66, v12', VMD)
    if 'nowopf' not in EXP:
        a.e('s_lshl_b32 s66, s2, 2')
        a.e('s_add_u32 s66, s66, s44')
        a.e('s_lshl_b32 s66, s66, 11')
        for q in range(2):
            a.vm_issue('wopf', 'buffer_load_dwordx4 v[240:243], v%d, %s, s66 offen offset:%d', VL16, sr(S_WO, 4), q * 1024)
    wd_loads()


def wo_pf(q0, q1):
    a.e('s_and_b32 s66, s2, 0xf8')
    a.e('s_lshl_b32 s66, s66, 2')
    a.e('s_lshl_b32 s67, s48, 4')
    a.e('s_add_u32 s66, s66, s67')
    a.e('s_add_u32 s66, s66, %d', q0)
    a.e('s_lshl_b32 s66, s66, 11')
    a.e('s_lshr_b32 s67, s7, 3')
    a.e('s_lshl_b32 s67, s67, 10')
    a.e('s_add_u32 s66, s66, s67')
    for q in range(q1 - q0):
        a.vm_issue('wopf', 'buffer_load_dwordx4 v[240:243], v%d, %s, s66 offen offset:%d', VL16, sr(S_WO, 4), (q & 1) * 2048)
        if q & 1:
            a.e('s_add_u32 s66, s66, 4096')


def wd_loads():
    for n in range(8):
        a.e('s_mov_b32 s66, %d', n * 2048)
        a.vm_issue('wd', 'buffer_load_dwordx4 %s, v%d, %s, s66 offen', vr(WD + 4 * n, 4), VMD, sr(S_WD, 4))


NW1 = 8 if 'nowopf' in EXP else 10
a.vm = list(vm_entry)


def dma(stage, parts='AQKV', dst=None):
    slot = (stage % 3) * SLOT
    tag = 'd%d' % stage
    L = []
    for ty, c in ((1, 'K'), (2, 'V'), (0, 'Q')):
        if c in parts:
            for b in range(4):
                d = slot + BQ + ty * 8192 if dst is None else dst[c]
                L.append((d + b * 2048, b * 98304 + ty * 2048, VOB, S_W))
    LA = [((slot if dst is None else dst['A']) + q * 2048, q * 32768, VOA, S_X) for q in range(8)] if 'A' in parts else []
    L = L[:4] + LA + L[4:]
    ks_regs(stage, 70, 71)
    for (d, so, v, s) in L:
        a.e('s_add_u32 m0, s72, %d', d)
        a.e('s_add_u32 s66, s%d, %d', 70 if s == S_X else 71, so)
        a.vm_issue(tag, 'buffer_load_dwordx4 v%d, %s, s66 offen lds', v, sr(s, 4))


a.vm_wait('d0')
a.e('s_barrier')
dma(2)
for i in range(13):
    a.vm_wait('d%d' % (i + 1))
    if 0 <= i - E('SB0', 0) < 10:
        stamp(1 + i - E('SB0', 0), 5)
    a.e('s_barrier')
    if 0 <= i - E('SB0', 0) < 10:
        stamp(1 + i - E('SB0', 0), 2)
    if i + 3 < 15:
        dma(i + 3)
    D15 = {'A': S3, 'K': S3 + 16384, 'V': S3 + 24576, 'Q': BQ}
    if i == 11:
        dma(15, 'K', D15)
    if i == 12:
        dma(15, 'A', D15)
        dma(15, 'VQ', D15)
a.vm_wait('d14')
a.e('s_barrier')
w1_loads()
a.vm_wait('d15')
a.e('s_branch H_b14')

a.e('WORK:')
a.vm = list(vm_entry)
a.e('v_mov_b32 v14, 0')
a.e('v_lshlrev_b32 v8, 5, v2')
a.e('v_add_u32 v8, %d, v8', WS_KEY)
a.e('s_lshl_b32 s66, s2, 2')
a.e('s_add_u32 s66, s66, s44')
a.e('s_cmp_lg_u32 s66, 2')
a.e('s_cbranch_scc1 W_nn')
for q in range(4):
    a.e('s_movk_i32 s66, %d', q * 2048)
    a.e('buffer_load_dword v%d, v8, %s, s66 offen offset:4' % (TT + q, WSR) + RD)
a.e('s_memrealtime s[66:67]')
a.e('s_waitcnt vmcnt(0) lgkmcnt(0)')
a.e('s_or_b32 s66, s66, 1')
a.e('W_nl:')
a.e('s_add_u32 s66, s66, 2')
a.e('v_cmp_eq_u32 vcc, s66, v%d', TT)
for q in range(1, 4):
    a.e('v_cmp_eq_u32 s[68:69], s66, v%d', TT + q)
    a.e('s_or_b64 vcc, vcc, s[68:69]')
a.e('s_cbranch_vccnz W_nl')
a.e('v_mov_b32 v10, 0')
a.e('v_mov_b32 v11, s66')
a.e('s_mov_b64 exec, 1')
a.e('buffer_store_dword v11, v10, %s, 0 offen' % sr(S_DBG, 4) + WT)
a.e('s_mov_b64 exec, -1')
a.e('W_nn:')
a.e('s_and_b32 s48, s44, 1')
if 'slowpf' in EXP:
    a.e('s_mov_b32 s68, s12')
    a.e('s_mov_b32 s69, s13')
    a.e('s_bitcmp0_b32 s64, 1')
    a.e('s_cselect_b32 s70, 0x%x, 0', 6291456)
    a.e('s_mov_b32 s71, 0x00020000')
    a.e('v_lshrrev_b32 v10, 3, v2')
    a.e('v_lshlrev_b32 v10, 11, v10')
    a.e('v_and_b32 v11, 7, v2')
    a.e('v_lshl_add_u32 v10, v11, 4, v10')
    a.e('s_lshl_b32 s66, s65, 1')
    a.e('s_add_u32 s66, s66, s48')
    a.e('s_mul_i32 s66, s66, %d', 48 * 2048)
    a.e('s_lshr_b32 s67, s64, 2')
    a.e('s_lshl_b32 s67, s67, 10')
    a.e('s_add_u32 s66, s66, s67')
    a.e('s_add_u32 s66, s66, 384')
    for q in range(6):
        a.vm_issue('pf', 'buffer_load_dwordx4 %s, v10, s[68:71], s66 offen', vr(224 + 4 * q, 4))
        if q < 5:
            a.e('s_add_u32 s66, s66, 16384')
a.vm_wait('d0')
a.e('s_barrier')
if E('ROWL', 1):
    a.vm_wait('d1')
    a.e('s_barrier')
a.e('s_lshl_b32 s50, s4, 7')
a.e('s_lshl_b32 s66, s5, 3')
a.e('s_add_u32 s50, s50, s66')
a.e('s_lshl_b32 s66, s48, 2')
a.e('s_add_u32 s50, s50, s66')
a.e('s_lshl_b32 s66, s50, 11')
a.e('s_add_u32 s67, s66, 4096')
for q in range(8):
    a.vm_issue('rows', 'buffer_load_dwordx4 %s, v%d, %s, s%d offen offset:%d', vr(XR + 4 * q, 4), VL16, sr(S_X, 4), 66 + (q >> 2), (q & 3) * 1024)
a.e('s_lshl_b32 s66, s48, 11')
a.e('s_add_u32 m0, s66, %d', L_KF)
a.e('s_nop 0')
for q in range(2):
    a.vm_issue('rows', 'buffer_load_dwordx4 v%d, %s, 0 offen offset:%d lds', VL16, sr(S_WV, 4), q * 1024)
a.e('s_lshl_b32 s66, s%d, 2', sCG)
a.e('s_add_u32 s66, s66, s%d', sKQ)
a.e('s_and_b32 s51, s66, 15')
a.e('s_lshr_b32 s67, s66, 4')
a.e('s_lshl_b32 s54, s67, 5')
a.e('s_lshl_b32 s66, s48, 4')
a.e('s_add_u32 s54, s54, s66')
a.e('s_add_u32 s54, s54, s51')
a.e('s_lshl_b32 s54, s54, 10')
a.e('s_add_u32 s54, s54, %d', WS_HU)
a.e('s_lshl_b32 s51, s51, 6')
a.e('v_lshrrev_b32 v10, 5, v2')
a.e('v_and_b32 v11, 31, v2')
a.e('v_lshlrev_b32 v12, 5, v10')
a.e('v_add_u32 v12, s51, v12')
a.e('v_mul_u32_u24 v12, 7168, v12')
a.e('v_lshl_add_u32 v12, v11, 4, v12')
a.e('s_lshl_b32 s67, s67, 9')
a.e('v_add_u32 v%d, s67, v12', VMW)
for r in range(4):
    a.e('v_mov_b32 v%d, -1', TT + r)
a.e('v_and_b32 v12, 3, v2')
a.e('v_lshlrev_b32 v12, 4, v12')
a.e('v_add_u32 v12, s53, v12')
for (lo, n, base) in ((4, 4, ('s53', -2048)), (24, 16, ('s55', 0)), (40, 16, ('s55', -32768))):
    a.e('s_add_u32 s66, %s, %d', base[0], base[1] & 0xffffffff)
    a.e('v_subrev_u32 v13, %d, v2', lo)
    a.e('v_cmp_gt_u32 vcc, %d, v13', n)
    a.e('v_lshlrev_b32 v13, 4, v13')
    a.e('v_add_u32 v13, s66, v13')
    a.e('v_cndmask_b32 v12, v12, v13, vcc')
a.e('s_sub_u32 s66, s56, 32768')
a.vm_issue('fill', 'buffer_store_dwordx4 %s, v%d, %s, s56 offen' + WT, vr(TT, 4), VL16, WSR)
a.vm_issue('fill', 'buffer_store_dwordx4 %s, v%d, %s, s66 offen' + WT, vr(TT, 4), VL16, WSR)
a.vm_issue('fill', 'buffer_store_dwordx4 %s, v%d, %s, s54 offen' + WT, vr(TT, 4), VL16, WSR)
a.vm_issue('fill', 'buffer_store_dwordx4 %s, v12, %s, 0 offen' + WT, vr(TT, 4), WSR)
loaded = []
dir_n = [0]


def moe_load(cnt, ctr):
    for _ in range(cnt):
        n = ctr[0]
        a.e('s_mov_b32 s66, %d', 0x7ffff000 if 'xmoe' in EXP else n * 7168)
        a.vm_issue('w%d' % n, 'buffer_load_dwordx4 %s, v%d, %s, s66 offen', vr(WG + 4 * n, 4), VMW, sr(S_MW, 4))
        loaded.append(n)
        ctr[0] += 1


def o_fill(q0, q1):
    for r in range(4):
        a.e('v_mov_b32 v%d, -1', 224 + r)
    a.e('s_lshl_b32 s67, s4, 3')
    a.e('s_lshl_b32 s66, s48, 2')
    a.e('s_add_u32 s67, s67, s66')
    a.e('s_lshl_b32 s67, s67, 15')
    a.e('s_lshl_b32 s66, s5, 11')
    a.e('s_add_u32 s67, s67, s66')
    for q in range(q0, q1):
        a.e('s_add_u32 s66, s67, %d', WS_O + (q >> 1) * 32768)
        a.vm_issue('ofill', 'buffer_store_dwordx4 v[224:227], v%d, %s, s66 offen offset:%d' + WT, VL16, WSR, (q & 1) * 1024)


def wk0_only(lab):
    a.e('s_cmp_lg_u32 s48, 0')
    a.e('s_cbranch_scc1 %s', lab)


def g_row(row):
    if 'xg' in EXP.split(','):
        return
    acc = TT + 4 + row
    a.e('v_mov_b32 v%d, 0', acc)
    for q in range(8):
        x = XR + 8 * row + q
        a.e('v_lshlrev_b32 v%d, 16, v%d', TT, x)
        a.e('v_and_b32 v%d, 0xffff0000, v%d', TT + 1, x)
        a.e('v_mul_f32 v%d, v%d, v%d', TT, TT, GWF + 2 * q)
        a.e('v_mul_f32 v%d, v%d, v%d', TT + 1, TT + 1, GWF + 2 * q + 1)
        a.e('v_cvt_pk_bf16_f32 v%d, 0, v%d', TT, TT)
        a.e('v_cvt_pk_bf16_f32 v%d, 0, v%d', TT + 1, TT + 1)
        a.e('v_add_f32 v%d, v%d, v%d', acc, acc, TT)
        a.e('v_add_f32 v%d, v%d, v%d', acc, acc, TT + 1)


WL = [int(x) for x in os.environ.get('WL', '0,0,0,8,0,8,0,8,0,8,0,0,0').split(',')]
GL = [int(x) for x in os.environ.get('GL', '6,6,6,4,6,4').split(',')]
WP = [int(x) for x in os.environ.get('WP', '99').split(',')]
OF = [int(x) for x in os.environ.get('OF', '2').split(',')]
assert sum(WL) == 32 and sum(GL) == 32 and PS + 3 + len(GL) == 13
GDOT = E('GDOT', 0)
mark = {}
gdone = 0
for i in range(13):
    if i == 0:
        a.vm_wait('d1')
    if i == 1:
        a.vm_wait('rows')
    if i == PB:
        a.vm_wait('fill')
    if i in (2, PS + 2):
        a.e('s_waitcnt lgkmcnt(0)')
    if 0 <= i - E('SB0', 0) < 10:
        stamp(1 + i - E('SB0', 0), 5)
    if i > 0 or not E('ROWL', 1):
        a.e('s_barrier')
    if i == 1:
        wk0_only('W_k%d' % i)
        a.vm_uncounted('buffer_load_dword v15, v14, %s, 0 offen' % sr(S_DBG, 4) + RD)
        a.e('W_k%d:', i)
        mark['tag'] = a.issued
    if i == PB:
        wk0_only('W_k%d' % i)
        a.e('v_mov_b32 v10, %d', L_FLG + 32)
        a.e('ds_read_b32 v12, v10')
        a.e('s_waitcnt vmcnt(%d)', a.issued - mark['tag'])
        a.e('s_mov_b32 s67, 0')
        a.e('W_ts:')
        a.e('v_cmp_eq_u32 vcc, 0, v15')
        a.e('s_cbranch_vccz W_tok')
        a.e('s_add_u32 s67, s67, 1')
        a.e('s_cmp_ge_u32 s67, %d', SPIN)
        spin_rec(2)
        a.e('s_cbranch_scc1 W_tok')
        a.e('s_sleep 4')
        a.e('buffer_load_dword v15, v14, %s, 0 offen' % sr(S_DBG, 4) + RD)
        a.e('s_waitcnt vmcnt(0)')
        a.e('s_branch W_ts')
        a.e('W_tok:')
        a.e('s_lshl_b32 s66, s2, 5')
        a.e('s_add_u32 s66, s66, %d', WS_KEY)
        a.e('v_mov_b32 v10, s66')
        a.e('v_mov_b32 v13, v15')
        a.e('s_waitcnt lgkmcnt(0)')
        a.e('s_mov_b64 exec, 1')
        a.vm_uncounted('buffer_store_dwordx2 v[12:13], v10, %s, 0 offen' % WSR + WT)
        a.e('s_mov_b64 exec, -1')
        a.e('W_k%d:', i)

    def collect():
        for q in range(4):
            a.e('s_movk_i32 s66, %d', q * 2048)
            a.vm_uncounted('buffer_load_dwordx2 %s, v8, %s, s66 offen' % (vr(XS + 2 * q, 2), WSR) + RD)
    if i == PS:
        wk0_only('W_k%d' % i)
        collect()
        a.e('W_k%d:', i)
        mark['keys'] = a.issued
    if i == PS + 2:
        a.e('v_mov_b32 v10, %d', L_FLG + 36)
        a.e('ds_read_b32 v11, v10')
        a.e('v_lshrrev_b32 v10, 5, v2')
        a.e('v_lshlrev_b32 v10, 6, v10')
        a.e('s_waitcnt lgkmcnt(0)')
        a.e('v_readfirstlane_b32 s66, v11')
        a.e('s_and_b32 s66, s66, 0x7ff')
        a.e('s_sub_u32 s66, 2047, s66')
        a.e('s_lshl_b32 s66, s66, 10')
        a.e('s_add_u32 s66, s66, s51')
        a.e('s_lshl_b32 s66, s66, 1')
        for q in range(4):
            a.vm_issue('xs', 'buffer_load_dwordx4 %s, v10, %s, s66 offen offset:%d', vr(XS + 4 * q, 4), sr(S_X, 4), 16 * q)
    moe_load(WL[i], dir_n)
    if i == E('WM', 99):
        a.e('s_lshl_b32 s66, s2, 1')
        a.e('s_add_u32 s66, s66, s48')
        a.e('s_lshl_b32 s66, s66, 12')
        for q in range(4):
            a.vm_issue('wopf', 'buffer_load_dwordx4 v[240:243], v%d, %s, s66 offen offset:%d', VL16, sr(S_WO, 4), q * 1024)
    if i in WP:
        k = WP.index(i)
        wo_pf(16 * k // len(WP), 16 * (k + 1) // len(WP))
    if i in OF and 'xofill' not in EXP:
        k = OF.index(i)
        o_fill(8 * k // len(OF), 8 * (k + 1) // len(OF))
    if i == 1:
        a.e('v_add_u32 v10, %d, v%d', L_KF, VL16)
        a.e('v_bfe_u32 v3, v2, 4, 1')
        a.e('v_lshrrev_b32 v11, 5, v2')
        a.e('v_lshl_add_u32 v3, v3, 1, v11')
        a.e('s_mov_b32 s67, 0xffff0000')
        a.e('s_mov_b32 s68, 0x00010001')
        a.e('s_mov_b32 s69, 0x00010001')
        for q in range(2):
            a.e('ds_read_b128 %s, v10 offset:%d', vr(WVR + 4 * q, 4), q * 1024)
        for r in range(4):
            a.e('v_mov_b32 v%d, 0', TT + r)
        a.e('s_waitcnt lgkmcnt(0)')
        for q in range(8):
            for r in range(4):
                a.e('v_dot2_f32_bf16 v%d, v%d, v%d, v%d', TT + r, XR + 8 * r + q, WVR + q, TT + r)
        nop(3)
        for q in range(2):
            a.e('ds_read_b128 %s, v10 offset:%d', vr(WVR + 4 * q, 4), 2048 + q * 1024)
        red4(TT)
        a.e('s_sub_u32 s66, %d, s50', 2047 + 0x8000)
        a.e('v_cvt_pk_bf16_f32 v%d, 0, v%d', TT, TT)
        a.e('v_sub_u32 v%d, s66, v3', TT + 1)
        a.e('v_ashrrev_i32 v%d, 31, v%d', TT + 4, TT)
        a.e('v_or_b32 v%d, 0x80000000, v%d', TT + 4, TT + 4)
        a.e('v_xor_b32 v%d, v%d, v%d', TT, TT, TT + 4)
        a.e('v_and_or_b32 v%d, v%d, s67, v%d', TT, TT, TT + 1)
        a.e('v_mov_b32 v10, %d', L_FLG + 32)
        a.e('s_mov_b64 exec, s[68:69]')
        a.e('ds_max_u32 v10, v%d', TT)
        a.e('s_mov_b64 exec, -1')
    if i == 2:
        for q in range(8):
            a.e('v_lshlrev_b32 v%d, 16, v%d', GWF + 2 * q, WVR + q)
            a.e('v_and_b32 v%d, 0xffff0000, v%d', GWF + 2 * q + 1, WVR + q)
        g_row(0)
    if i == 3:
        g_row(1); g_row(2)
    if i == 4:
        g_row(3)
    if i == PS + 1:
        wk0_only('W_c%d' % i)
        a.e('s_waitcnt vmcnt(%d)', a.issued - mark['keys'])
        a.e('s_mov_b32 s67, 0')
        a.e('W_cs:')
        a.e('v_xor_b32 v10, v%d, v15', XS + 1)
        for q in range(1, 4):
            a.e('v_xor_b32 v11, v%d, v15', XS + 2 * q + 1)
            a.e('v_or_b32 v10, v10, v11')
        a.e('v_cmp_ne_u32 vcc, 0, v10')
        a.e('s_cbranch_vccz W_cok')
        a.e('s_add_u32 s67, s67, 1')
        a.e('s_cmp_ge_u32 s67, %d', SPIN)
        spin_rec(3)
        a.e('s_cbranch_scc1 W_cok')
        a.e('s_sleep 4')
        collect()
        a.e('s_waitcnt vmcnt(0)')
        a.e('s_branch W_cs')
        a.e('W_cok:')
        a.e('v_max_u32 v12, v%d, v%d', XS, XS + 2)
        a.e('v_max3_u32 v12, v12, v%d, v%d', XS + 4, XS + 6)
        wave_reduce([12], 'v_max_u32', 68)
        a.e('v_mov_b32 v10, %d', L_FLG + 36)
        a.e('ds_write_b32 v10, v12')
        a.e('W_c%d:', i)
    if i == 4:
        G0 = TT + 4
        red4(G0)
        a.e('v_cvt_pk_bf16_f32 v%d, 0, v%d', G0, G0)
        a.e('v_mul_f32 v%d, s%d, v%d', G0, sL2E, G0)
        a.e('v_exp_f32 v%d, -v%d', G0, G0)
        a.e('s_lshl_b32 s66, s50, 4')
        a.e('v_add_f32 v%d, 1.0, v%d', G0, G0)
        a.e('v_rcp_f32 v%d, v%d', G0, G0)
        a.e('s_add_u32 s66, s66, %d', WS_G)
        a.e('v_cvt_pk_bf16_f32 v%d, 0, v%d', G0, G0)
        a.e('v_lshlrev_b32 v10, 2, v3')
        a.e('s_mov_b32 exec_lo, 0x00010001')
        a.e('s_mov_b32 exec_hi, 0x00010001')
        a.vm_issue('g', 'buffer_store_dword v%d, v10, %s, s66 offen' + WT, G0, WSR)
        a.e('s_mov_b64 exec, -1')
    if i == PS + 3:
        a.vm_wait('xs')
        for r in range(8):
            a.e('v_mov_b32 v%d, 0', GACC + r)
    if i >= PS + 3:
        for n in loaded[gdone:gdone + GL[i - PS - 3]]:
            a.vm_wait('w%d' % n)
            if 'xgemv' not in EXP:
                emit(gemv_rows(WG + 4 * n, XS, n, GACC, TT, GDOT))
        gdone += GL[i - PS - 3]
        assert gdone <= len(loaded), (i, gdone, len(loaded))


def red_half(acc, vaddr, t):
    a.e('v_and_b32 v%d, 31, v2', vaddr)
    a.e('v_lshrrev_b32 v%d, 5, v2', t)
    a.e('v_lshl_add_u32 v%d, v%d, 1, v%d', vaddr, vaddr, t)
    for q in range(4):
        a.e('v_permlane32_swap_b32 v%d, v%d', acc + q, acc + 4 + q)
    a.e('v_lshlrev_b32 v%d, 4, v%d', vaddr, vaddr)
    for q in range(4):
        a.e('v_add_f32 v%d, v%d, v%d', acc + q, acc + q, acc + 4 + q)


red_half(GACC, TT + 4, TT + 5)
a.vm_issue('hu', 'buffer_store_dwordx4 %s, v%d, %s, s54 offen' + WT, vr(GACC, 4), TT + 4, WSR)
a.e('s_barrier')
w1_loads()
a.e('H_b14:')
a.e('s_barrier')
a.vm = []
if 'noprio' not in EXP:
    a.e('s_setprio %d', E('HPRIO', 3))
a.vm = ['old'] + ['w1'] * NW1
emit(post_addr('h'))
KR, VR, PKH, KVA, ZA, ONES = 16, 208, 32, 192, 200, 204
a.e('s_and_b32 s66, s44, 2')
a.e('s_lshl_b32 s67, s66, 2')
a.e('s_add_u32 s67, s67, %d', L_FLG)
a.e('v_mov_b32 v10, s67')
a.e('s_lshl_b32 s66, s66, 12')
a.e('s_and_b32 s67, s44, 1')
a.e('s_lshl_b32 s67, s67, 10')
a.e('v_add_u32 v11, s66, v%d', VL16)
a.e('v_add_u32 v12, s67, v11')
a.e('v_add_u32 v11, %d, v11', L_VST)
for r in range(4):
    a.e('v_mov_b32 v%d, 0x3f803f80', ONES + r)
a.e('H_fk:')
a.e('ds_read_b64 v[14:15], v10')
a.e('s_waitcnt lgkmcnt(0)')
a.e('v_min_u32 v14, v14, v15')
a.e('v_cmp_eq_u32 vcc, 0, v14')
a.e('s_cbranch_vccnz H_fk')
stamp(2)
for k in range(4):
    a.e('ds_read_b128 %s, v12 offset:%d', vr(KR + 4 * k, 4), L_KST + k * 2048)
P = phi_packed(KR, PKH, 16, TT)
per = len(P) // 4
for k in range(4):
    a.e('s_waitcnt lgkmcnt(%d)', 3 - k)
    emit(P[k * per:(k + 1) * per])
stamp(4)
a.e('H_fv:')
a.e('ds_read_b64 v[14:15], v10 offset:16')
a.e('s_waitcnt lgkmcnt(0)')
a.e('v_min_u32 v13, v14, v15')
a.e('v_cmp_eq_u32 vcc, 0, v13')
a.e('s_cbranch_vccnz H_fv')
for k in range(4):
    for eb in range(2):
        a.e('ds_read_b128 %s, v11 offset:%d', vr(VR + 8 * k + 4 * eb, 4), k * 2048 + eb * 1024)
a.e('v_max_u32 v13, v14, v15')
a.e('v_cmp_eq_u32 vcc, 2, v13')
a.e('s_cbranch_vccz H_ne')
phi_eps(PKH, 16, TT)
a.e('H_ne:')
nop(1)
for k in range(4):
    a.e(mfma(ZA, PKH + 4 * k, ONES, '0' if k == 0 else None))
    for eb in range(2):
        a.e('s_waitcnt lgkmcnt(%d)', 7 - 2 * k - eb)
        a.e(mfma(KVA + 4 * eb, PKH + 4 * k, VR + 8 * k + 4 * eb, '0' if k == 0 else None))
a.e('v_lshrrev_b32 v13, 4, v2')
a.e('v_lshlrev_b32 v13, 4, v13')
a.e('v_and_b32 v14, 15, v2')
a.e('v_cmp_eq_u32 s[68:69], 0, v14')
a.e('s_lshl_b32 s66, s44, 11')
a.e('s_add_u32 s66, s66, %d', L_QH)
a.e('v_add_u32 v3, s66, v%d', VL16)
a.vm_wait('old')
nop(2)
for q in range(4):
    a.e('v_cvt_pk_bf16_f32 v%d, v%d, v%d', TT + q, KVA + 2 * q, KVA + 2 * q + 1)
a.vm_issue('kvs', 'buffer_store_dwordx4 %s, v%d, %s, s56 offen' + WT, vr(TT, 4), VL16, WSR)
a.e('s_mov_b64 exec, s[68:69]')
a.vm_issue('kvs', 'buffer_store_dwordx4 %s, v13, %s, s53 offen' + WT, vr(ZA, 4), WSR)
a.e('s_mov_b64 exec, -1')
stamp(3)
if STAMPS == 8:
    stamp(3, 8)
    a.e('s_waitcnt vmcnt(0)')
    stamp(4, 8)
a.e('s_lshr_b32 s62, s%d, 2', sCG)
a.e('s_lshl_b32 s62, s62, 15')
a.e('s_and_b32 s66, s%d, 3', sCG)
a.e('s_lshl_b32 s66, s66, 8')
a.e('s_add_u32 s62, s62, s66')
a.e('s_lshl_b32 s66, s44, 6')
a.e('s_add_u32 s62, s62, s66')
a.e('s_add_u32 s62, s62, %d', WS_HU)
a.e('s_add_u32 s63, s62, 16384')
a.e('v_lshrrev_b32 v8, 2, v2')
a.e('v_lshlrev_b32 v8, 10, v8')
a.e('v_and_b32 v13, 3, v2')
a.e('v_lshl_add_u32 v8, v13, 4, v8')
if E('XG', -2) == -2:
    x_loads()
a.e('s_setprio 0')
a.e('s_barrier')
a.e('ds_read_b128 %s, v3', vr(QP, 4))
a.e('ds_read_b128 %s, v3 offset:1024', vr(QP + 4, 4))
stamp(5)
stamp(4, 6)
for k in range(R1):
    wo_pair(allrounds[k])
stamp(5, 6)
a.e('s_waitcnt lgkmcnt(0)')
phi_q('P_qh')
c_addr()
stamp(6, 6)
stamp(6)
for q in range(2):
    a.vm_issue('hul', 'buffer_load_dwordx4 %s, v8, %s, s%d offen' + RD, vr(HUB + 4 * q, 4), WSR, 62 + q)
R2 = E('R2', 0)
if R2:
    a.e('v_mov_b32 v5, %d', L_FLG + 48)
    a.e('H_fi:')
    a.e('ds_read_b128 v[12:15], v5')
    a.e('s_waitcnt lgkmcnt(0)')
    a.e('v_min_u32 v12, v12, v13')
    a.e('v_min3_u32 v12, v12, v14, v15')
    a.e('v_cmp_eq_u32 vcc, 0, v12')
    a.e('s_cbranch_vccz H_fg')
    a.e('s_sleep 1')
    a.e('s_branch H_fi')
    a.e('H_fg:')
    for k in range(R1, R1 + R2):
        wo_pair(allrounds[k])
stamp(3, 6)
a.e('s_lshl_b32 s66, s6, 6')
a.e('s_add_u32 s66, s66, %d', WS_Z)
a.e('v_lshlrev_b32 v%d, 10, v2', VPR)
a.e('v_add_u32 v%d, s66, v%d', VPR, VPR)
a.e('s_cmp_lg_u32 s44, 0')
a.e('s_cbranch_scc1 H_pd')
a.e('s_mov_b32 s59, 0')
a.e('H_pl:')
a.e('buffer_load_dword v14, v%d, %s, 0 offen' % (VPR, WSR) + RD)
a.e('s_waitcnt vmcnt(0)')
a.e('v_cmp_eq_u32 vcc, -1, v14')
a.e('s_cbranch_vccz H_pd')
a.e('s_add_u32 s59, s59, 1')
a.e('s_cmp_ge_u32 s59, %d', SPIN)
spin_rec(4)
a.e('s_cbranch_scc1 H_pd')
a.e('s_sleep 2')
a.e('s_branch H_pl')
a.e('H_pd:')

a.e('POST:')
a.vm = ['wo']
a.e('s_waitcnt lgkmcnt(0)')
stamp(1, 6)
a.e('s_barrier')
stamp(2, 6)
stamp(7)
a.e('s_mov_b32 s66, %d', WS_G)
a.vm_issue('g', 'buffer_load_dword v%d, v%d, %s, s66 offen' + RD, GR, VG, WSR)
a.e('ds_read_b128 %s, v11', vr(ZF, 4))
a.e('ds_read_b128 %s, v10', vr(KF, 4))
a.e('ds_read_b128 %s, v10 offset:1024', vr(KF + 4, 4))
a.e('v_mov_b32 v3, %d', L_FLG + 36)
a.e('ds_read_b32 v4, v3')
a.e('s_waitcnt lgkmcnt(3)')
for sb in range(2):
    a.e(mfma(DEN + 4 * sb, ZF, PQ + 4 * sb, '0'))
a.e('s_waitcnt lgkmcnt(1)')
for sb in range(2):
    for eb in range(2):
        a.e(mfma(NA + 8 * sb + 4 * eb, KF + 4 * eb, PQ + 4 * sb, '0'))
nop(4)
for sb in range(2):
    a.e('v_cvt_pk_bf16_f32 v%d, 0, v%d', DEN + 4 * sb, DEN + 4 * sb)
for sb in range(2):
    a.e('v_add_f32 v%d, s%d, v%d', DEN + 4 * sb, sEPS, DEN + 4 * sb)
for sb in range(2):
    a.e('v_cvt_pk_bf16_f32 v%d, 0, v%d', DEN + 4 * sb, DEN + 4 * sb)
for sb in range(2):
    a.e('v_rcp_f32 v%d, v%d', DEN + 4 * sb, DEN + 4 * sb)
for sb in range(2):
    N = NA + 8 * sb
    for r in range(8):
        a.e('v_cvt_pk_bf16_f32 v%d, 0, v%d', N + r, N + r)
    for q in range(4):
        a.e('v_pk_mul_f32 %s, %s, %s op_sel_hi:[1,0]', vr(N + 2 * q, 2), vr(N + 2 * q, 2), vr(DEN + 4 * sb, 2))
    for q in range(4):
        a.e('v_cvt_pk_bf16_f32 v%d, v%d, v%d', KF + 4 * sb + q, N + 2 * q, N + 2 * q + 1)
    a.vm_issue('os', 'buffer_store_dwordx4 %s, v%d, %s, s%d offen' + WT, vr(KF + 4 * sb, 4), VL16, WSR, 60 + sb)
stamp(8)
if STAMPS == 8:
    stamp(1, 8)
    a.e('s_waitcnt vmcnt(0)')
    stamp(2, 8)
a.e('s_waitcnt lgkmcnt(0)')
a.e('v_readfirstlane_b32 s%d, v4', sKEY)

VO0, VO1, VW = 3, 4, 10
stamp(6, 4)
a.e('s_waitcnt vmcnt(%d)', 5 + 2 * R2)
a.vm = []
a.e('s_barrier')
a.e('s_cmp_eq_u32 s45, 0')
a.e('s_cbranch_scc0 Q_hg')
sv = list(a.vm); si = a.issued
NPL = E('NPL', 0)
for r in allrounds[R1 + R2:16 - NPL]:
    wo_pair(r)
a.vm = sv; a.issued = si
a.e('s_branch Q_hd')
a.e('Q_hg:')
a.e('s_waitcnt vmcnt(%d)', 3 + 2 * R2)
a.e('s_mov_b32 s59, 0')
a.e('Q_hchk:')
a.e('v_max3_u32 v5, v%d, v%d, v%d', HUB, HUB + 1, HUB + 2)
a.e('v_max3_u32 v5, v5, v%d, v%d', HUB + 3, HUB + 4)
a.e('v_max3_u32 v5, v5, v%d, v%d', HUB + 5, HUB + 6)
a.e('v_max_u32 v5, v5, v%d', HUB + 7)
a.e('v_cmp_eq_u32 vcc, -1, v5')
a.e('s_cbranch_vccz Q_hok')
a.e('s_add_u32 s59, s59, 1')
a.e('s_cmp_ge_u32 s59, %d', SPIN)
spin_rec(5)
a.e('s_cbranch_scc1 Q_hok')
a.e('s_sleep 4')
for q in range(2):
    a.e('buffer_load_dwordx4 %s, v8, %s, s%d offen' % (vr(HUB + 4 * q, 4), WSR, 62 + q) + RD)
a.e('s_waitcnt vmcnt(0)')
a.e('s_branch Q_hchk')
a.e('Q_hok:')
for m in range(2):
    for q in range(2):
        a.e('v_permlane16_swap_b32 v%d, v%d', HUB + 4 * m + q, HUB + 4 * m + 2 + q)
for m in range(2):
    for q in range(2):
        a.e('v_add_f32 v%d, v%d, v%d', HUB + 4 * m + q, HUB + 4 * m + q, HUB + 4 * m + 2 + q)
a.e('v_and_b32 v5, 3, v2')
a.e('v_lshlrev_b32 v5, 3, v5')
for m in range(2):
    a.e('v_permlane32_swap_b32 v%d, v%d', HUB + 4 * m, HUB + 4 * m + 1)
a.e('v_bfe_u32 v6, v2, 4, 1')
a.e('v_lshl_add_u32 v5, v6, 2, v5')
G_, U_, T_ = HUB, HUB + 4, HUB + 1
a.e('v_add_f32 v%d, v%d, v%d', G_, HUB, HUB + 1)
a.e('v_add_f32 v%d, v%d, v%d', U_, HUB + 4, HUB + 5)
a.e('v_lshrrev_b32 v6, 5, v2')
a.e('v_lshl_add_u32 v5, v6, 1, v5')
for p in ('row_ror:4', 'row_ror:8'):
    for r in (G_, U_):
        a.e('v_add_f32_dpp v%d, v%d, v%d %s row_mask:0xf bank_mask:0xf', r, r, r, p)
    nop(1)
a.e('s_lshl_b32 s66, s44, 5')
a.e('s_add_u32 s66, s66, %d', L_HS)
a.e('v_cvt_pk_bf16_f32 v%d, 0, v%d', G_, G_)
a.e('v_cvt_pk_bf16_f32 v%d, 0, v%d', U_, U_)
a.e('v_mul_f32 v%d, s%d, v%d', T_, sL2E, G_)
a.e('v_exp_f32 v%d, -v%d', T_, T_)
a.e('v_add_u32 v5, s66, v5')
a.e('v_add_f32 v%d, 1.0, v%d', T_, T_)
a.e('v_rcp_f32 v%d, v%d', T_, T_)
a.e('v_lshlrev_b32 v6, 4, v6')
a.e('v_mul_f32 v%d, v%d, v%d', T_, T_, G_)
a.e('v_cvt_pk_bf16_f32 v%d, 0, v%d', T_, T_)
a.e('v_add_u32 v6, s66, v6')
a.e('v_mul_f32 v%d, v%d, v%d', T_, T_, U_)
a.e('v_cvt_pk_bf16_f32 v%d, v%d, v%d', T_, T_, T_)
a.e('ds_write_b16 v5, v%d', T_)
a.e('ds_read_b128 %s, v6', vr(HUB + 4, 4))
for r in range(8):
    a.e('v_mov_b32 v%d, 0', GACC + r)
a.e('s_waitcnt lgkmcnt(0)')
for n in range(8):
    emit(gemv_rows(WD + 4 * n, HUB + 4, n, GACC, TT, True))
red_half(GACC, TT + 4, TT + 5)
a.e('s_add_u32 s66, s72, %d', L_Y4)
a.e('v_add_u32 v%d, s66, v%d', TT + 4, TT + 4)
a.e('ds_write_b128 v%d, %s', TT + 4, vr(GACC, 4))
a.e('s_waitcnt lgkmcnt(0)')
a.e('Q_hd:')
if E('XG', -2) == -1:
    x_loads()
a.e('s_lshl_b32 s53, s45, 12')
a.e('s_add_u32 s53, s53, s72')
a.e('s_lshl_b32 s54, s45, 16')
stamp(7, 4)
a.e('s_and_b32 s%d, s%d, 0x7ff', sIDX, sKEY)
a.e('s_sub_u32 s%d, 2047, s%d', sIDX, sIDX)
a.e('s_lshl_b32 s66, s6, 3')
a.e('s_lshl_b32 s67, s44, 1')
a.e('s_add_u32 s66, s66, s67')
a.e('s_lshl_b32 s66, s66, 15')
a.e('s_lshl_b32 s67, s45, 11')
a.e('s_add_u32 s66, s66, s67')
a.e('v_add_u32 v%d, s66, v%d', VO0, VL16)
a.e('v_add_u32 v%d, 32768, v%d', VO1, VO0)
a.e('s_lshr_b32 s63, s%d, 6', sM0)


def o_list(g, counted=True, sreg=66):
    b = OB + 16 * (g % 3)
    return ['buffer_load_dwordx4 %s, v%d, %s, s%d offen offset:%d' % (vr(b + 8 * hh + 4 * sb, 4), VO0 + sb, WSR, sreg, hh * 1024) + (RD1 if counted else RD)
            for hh in range(2) for sb in range(2)]


def o_loads(g, counted=True, sreg=66):
    for ins in o_list(g, counted, sreg):
        if counted:
            a.vm_issue('o%d' % g, ins)
        else:
            a.vm_uncounted(ins)


def o_soff(g, dst):
    a.e('s_add_u32 s%d, s63, %d', dst, g * 4096)
    a.e('s_and_b32 s%d, s%d, 0x7fff', dst, dst)


def o_check(g):
    b = OB + 16 * (g % 3)
    return (['v_max3_u32 v5, v%d, v%d, v%d' % (b, b + 1, b + 2)] + ['v_max3_u32 v5, v5, v%d, v%d' % (b + q, b + q + 1) for q in range(3, 15, 2)] +
            ['v_max_u32 v5, v5, v%d' % (b + 15), 'v_cmp_eq_u32 vcc, -1, v5'])


a.e('v_lshrrev_b32 v5, 4, v2')
a.e('v_bfe_u32 v6, v2, 2, 2')
a.e('v_lshl_add_u32 v8, v5, 2, v6')
a.e('v_bfe_u32 v6, v8, 1, 2')
a.e('v_lshlrev_b32 v8, 7, v8')
a.e('v_and_b32 v5, 3, v2')
a.e('v_lshl_add_u32 v8, v5, 3, v8')
a.e('s_lshl_b32 s66, s45, 16')
a.e('v_add_u32 v8, s66, v8')
for cb in range(4):
    a.e('v_xor_b32 v5, %d, v6', cb)
    a.e('v_lshl_add_u32 v%d, v5, 5, v8', VW + cb)
a.e('s_lshr_b32 s66, s%d, 7', sIDX)
a.e('s_cmp_eq_u32 s66, s6')
a.e('s_cselect_b32 s51, 1, 0')
a.e('s_barrier')
H2D = E('H2D', 0)
if H2D:
    a.e('s_sleep %d', H2D)
stamp(9)
stamp(8, 4)
stamp(1, 7)
if STAMPS == 7:
    a.e('s_mov_b32 s100, 0')
if E('P2PRIO', 0):
    a.e('s_cmp_eq_u32 s45, 0')
    a.e('s_cbranch_scc1 Q_np')
    a.e('s_setprio 1')
    a.e('Q_np:')
o_soff(0, 66)
o_loads(0)
a.e('s_cmp_eq_u32 s45, 0')
a.e('s_cbranch_scc1 Q_ny4')
a.e('s_lshl_b32 s66, s44, 8')
a.e('s_add_u32 s66, s66, %d', L_Y4)
a.e('v_lshlrev_b32 v5, 2, v2')
a.e('v_add_u32 v6, s66, v5')
for q in range(4):
    a.e('ds_read_b32 v%d, v6 offset:%d', GACC + q, q * 1024)
a.e('s_waitcnt lgkmcnt(0)')
a.e('v_add_f32 v%d, v%d, v%d', GACC, GACC, GACC + 1)
a.e('v_add_f32 v%d, v%d, v%d', GACC + 2, GACC + 2, GACC + 3)
a.e('v_add_f32 v%d, v%d, v%d', GACC, GACC, GACC + 2)
a.vm_uncounted('buffer_store_dword v%d, v5, %s, s55 offen' % (GACC, WSR) + WT)
a.e('Q_ny4:')
T2L = ['v_sub_f32 v%d, 1.0, v%d' % (OM, GR), 'v_cvt_pk_bf16_f32 v%d, 0, v%d' % (OM, OM)]
for q in range(8):
    T2L += ['v_lshlrev_b32 v%d, 16, v%d' % (T2 + 2 * q, XO + q), 'v_and_b32 v%d, 0xffff0000, v%d' % (T2 + 2 * q + 1, XO + q),
            'v_mul_f32 v%d, v%d, v%d' % (T2 + 2 * q, T2 + 2 * q, OM), 'v_mul_f32 v%d, v%d, v%d' % (T2 + 2 * q + 1, T2 + 2 * q + 1, OM),
            'v_cvt_pk_bf16_f32 v%d, 0, v%d' % (T2 + 2 * q, T2 + 2 * q), 'v_cvt_pk_bf16_f32 v%d, 0, v%d' % (T2 + 2 * q + 1, T2 + 2 * q + 1)]
T2L += ['v_mov_b32 v%d, v%d' % (GR + 2, GR), 'v_mov_b32 v%d, v%d' % (GR + 3, GR),
        's_lshl_b32 s66, s44, 12', 's_add_u32 s66, s66, s54', 'v_add_u32 v6, s66, v%d' % VL16, 'v_xor_b32 v7, 0x10000, v6']
o_soff(1, 66)
o_loads(1)


def wo_reads(hd):
    return ['ds_read_b64_tr_b16 %s, v%d offset:%d' % (vr(WOF + 16 * (hd & 1) + 4 * cb + 2 * tt, 2), VW + cb, hd * 4096 + tt * 2048)
            for cb in range(4) for tt in range(2)]


if R1 < 2:
    a.vm_wait('o0')
    a.e('s_barrier')
emit(wo_reads(0))
stamp(9, 4)
a.vm_wait('o0')
stamp(10, 4)
emit(o_check(0))
a.e('s_cbranch_vccnz Q_rt0')
def y_sum():
    a.e('s_cmp_eq_u32 s51, 0')
    a.e('s_cbranch_scc1 Q_ny1')
    a.e('s_mov_b32 s59, 0')
    a.e('Q_ychk:')
    a.e('s_waitcnt vmcnt(0)')
    a.e('v_max3_u32 v5, v%d, v%d, v%d', YL, YL + 1, YL + 2)
    a.e('v_max3_u32 v5, v5, v%d, v%d', YL + 3, YL + 4)
    a.e('v_max3_u32 v5, v5, v%d, v%d', YL + 5, YL + 6)
    a.e('v_max_u32 v5, v5, v%d', YL + 7)
    a.e('v_cmp_eq_u32 vcc, -1, v5')
    a.e('s_cbranch_vccz Q_yok')
    a.e('s_add_u32 s59, s59, 1')
    a.e('s_cmp_ge_u32 s59, %d', SPIN)
    spin_rec(6)
    a.e('s_cbranch_scc1 Q_yok')
    a.e('s_sleep 4')
    for q in range(2):
        a.e('buffer_load_dwordx4 %s, v%d, %s, s64 offen offset:%d' % (vr(YL + 4 * q, 4), VL16, WSR, q * 1024) + RD)
    a.e('s_branch Q_ychk')
    a.e('Q_yok:')
    for q in range(4):
        a.e('v_add_f32 v%d, v%d, v%d', YL + q, YL + q, YL + 4 + q)
    nop(2)
    for q in range(2):
        a.e('v_permlane16_swap_b32 v%d, v%d', YL + q, YL + 2 + q)
    for q in range(2):
        a.e('v_add_f32 v%d, v%d, v%d', YL + q, YL + q, YL + 2 + q)
    a.e('v_and_b32 v5, 15, v2')
    a.e('v_lshlrev_b32 v5, 4, v5')
    a.e('v_permlane32_swap_b32 v%d, v%d', YL, YL + 1)
    a.e('v_bfe_u32 v8, v2, 4, 1')
    a.e('v_lshl_add_u32 v5, v8, 3, v5')
    a.e('v_lshrrev_b32 v8, 5, v2')
    a.e('v_lshl_add_u32 v5, v8, 2, v5')
    a.e('v_add_f32 v%d, v%d, v%d', YL, YL, YL + 1)
    a.e('s_lshl_b32 s66, s3, 8')
    a.e('s_add_u32 s66, s66, %d', L_YS)
    a.e('v_add_u32 v5, s66, v5')
    a.e('ds_write_b32 v5, v%d', YL)
    a.e('v_mov_b32 v5, %d', L_FLG + 40)
    a.e('v_mov_b32 v8, 1')
    a.e('s_mov_b64 exec, 1')
    a.e('ds_add_u32 v5, v8')
    a.e('s_mov_b64 exec, -1')
    a.e('s_waitcnt lgkmcnt(0)')
    a.e('Q_ny1:')


def y_upd():
    a.e('s_cmp_eq_u32 s51, 0')
    a.e('s_cbranch_scc1 Q_ny2')
    a.e('s_cmp_lg_u32 s3, 0')
    a.e('s_cbranch_scc1 Q_ny2')
    a.e('v_mov_b32 v5, %d', L_FLG + 40)
    a.e('Q_yw:')
    a.e('ds_read_b32 v8, v5')
    a.e('s_waitcnt lgkmcnt(0)')
    a.e('v_cmp_ne_u32 vcc, 8, v8')
    a.e('s_cbranch_vccnz Q_yw')
    a.e('v_lshlrev_b32 v8, 2, v2')
    a.e('v_add_u32 v8, %d, v8', L_YS)
    for w in range(8):
        a.e('ds_read_b32 v%d, v8 offset:%d', YL + w, w * 256)
    a.e('s_and_b32 s66, s%d, 0xffff0000', sKEY)
    a.e('s_xor_b32 s67, s66, 0x80000000')
    a.e('s_not_b32 s68, s66')
    a.e('s_and_b32 s68, s68, 0xffff0000')
    a.e('s_cmp_ge_u32 s66, 0x80000000')
    a.e('s_cselect_b32 s66, s67, s68')
    a.e('v_mov_b32 v40, s66')
    a.e('v_mul_f32 v40, s%d, v40', sL2E)
    a.e('v_exp_f32 v40, -v40')
    nop(1)
    a.e('v_add_f32 v40, 1.0, v40')
    a.e('v_rcp_f32 v40, v40')
    nop(1)
    a.e('v_cvt_pk_bf16_f32 v40, 0, v40')
    a.e('s_waitcnt lgkmcnt(0)')
    for w in range(1, 8):
        a.e('v_add_f32 v%d, v%d, v%d', YL, YL, YL + w)
    a.e('v_cvt_pk_bf16_f32 v%d, 0, v%d', YL, YL)
    a.e('v_mul_f32 v%d, v%d, v40', YL, YL)
    a.e('v_cvt_pk_bf16_f32 v%d, 0, v%d', YL, YL)
    a.e('ds_write_b32 v8, v%d offset:2048', YL)
    a.e('s_waitcnt lgkmcnt(0)')
    a.e('Q_ny2:')


GB2 = 8 - NPL // 2
YG = E('YG', 4)
XG = E('XG', -2)
lr = allrounds[16 - NPL:]
GBW = max(1, R1 // 2)
for g in range(8):
    b = OB + 16 * (g % 3)
    a.e('Q_go%d:', g)
    stamp(2 + g, 7)
    if g == 0:
        stamp(1)
    if g == YG:
        a.e('s_cmp_eq_u32 s51, 0')
        a.e('s_cbranch_scc1 Q_ny0')
        a.e('s_lshl_b32 s64, s7, 14')
        a.e('s_lshl_b32 s66, s3, 11')
        a.e('s_add_u32 s64, s64, s66')
        a.e('s_add_u32 s64, s64, %d', WS_YP)
        for q in range(2):
            a.vm_uncounted('buffer_load_dwordx4 %s, v%d, %s, s64 offen offset:%d' % (vr(YL + 4 * q, 4), VL16, WSR, q * 1024) + RD)
        a.e('Q_ny0:')
    if g == E('PG', 5):
        a.e('s_cmp_eq_u32 s45, 0')
        a.e('s_cbranch_scc1 Q_np2')
        a.e('s_setprio 1')
        a.e('Q_np2:')
    if g == YG + 1:
        y_sum()
    for hh in range(2):
        hd = 2 * g + hh
        R = wo_reads(hd + 1) if hd + 1 < 16 else []
        LD = o_list(g + 2) if hh == 0 and g + 2 < 8 else []
        CK = o_check(g + 1) if hh == 1 and g + 1 < 8 else []
        if LD:
            o_soff(g + 2, 66)
        if hh == 1 and g + 1 == GBW:
            a.e('s_waitcnt lgkmcnt(0)')
            a.e('s_barrier')
        FL = []
        if hd in (12, 14, 15):
            n_ = {12: 16, 14: 16, 15: 99}[hd]
            FL, T2L = T2L[:n_], T2L[n_:]
            if hd == 12:
                a.vm_wait('xo')
        late = hh == 1 and g + 1 == GB2
        k = 0
        for cb in range(4):
            a.e('s_waitcnt lgkmcnt(%d)', 6 - 2 * cb + k)
            for sb in range(2):
                i = 2 * cb + sb
                a.e(mfma(AC2 + 16 * sb + 4 * cb, WOF + 16 * hh + 4 * cb, b + 8 * hh + 4 * sb, '0' if hd == 0 else None))
                if CK and i == 2:
                    a.vm_wait('o%d' % (g + 1))
                    if late:
                        a.e('s_barrier')
                if i > (1 if late else 0) and k < len(R):
                    for _ in range((2 if i >= 6 else 1) if late else (2 if i == 7 else 1)):
                        a.e(R[k]); k += 1
                if LD and i % 2 == 0:
                    a.vm_issue('o%d' % (g + 2), LD.pop(0))
                if hh == 0 and g == XG and i == 7:
                    x_loads()
                if hh == 1 and lr and i in (0, 4) and g + 3 <= GB2:
                    kh, m = lr.pop(0)
                    a.e('s_add_u32 s67, s%d, %d', sM0, m * 262144)
                    a.e('s_and_b32 s67, s67, 0x1fffff')
                    a.e('s_add_u32 m0, s53, %d', kh * 65536 + m * 8192)
                    a.e('s_add_u32 s67, s67, s54')
                    a.e('s_add_u32 s67, s67, %d', kh * 131072)
                    a.vm_issue('wo', 'buffer_load_dwordx4 v%d, %s, s67 offen lds', VWO, sr(S_WO, 4))
                for _ in range(-(-len(FL) // (8 - i))):
                    a.e(FL.pop(0))
                if CK and i >= 2:
                    for _ in range(2 if i >= 5 else 1):
                        a.e(CK.pop(0))
        assert k == len(R) and not LD and not CK
    if g + 1 < 8:
        a.e('s_cbranch_vccnz Q_rt%d', g + 1)
assert not lr and not T2L
stamp(10)
stamp(1, 4)
nop(4)
a.e('s_cmp_eq_u32 s45, 0')
a.e('s_cbranch_scc1 Q_x0')
for q in range(4):
    a.e('ds_write_b128 v6, %s offset:%d', vr(AC2 + 4 * q, 4), q * 1024)
for r in range(16):
    a.e('v_mov_b32 v%d, v%d', AC2 + r, AC2 + 16 + r)
a.e('s_branch Q_x1')
a.e('Q_x0:')
for q in range(4):
    a.e('ds_write_b128 v6, %s offset:%d', vr(AC2 + 16 + 4 * q, 4), q * 1024)
a.e('Q_x1:')
y_upd()
stamp(2, 4)
a.e('s_waitcnt lgkmcnt(0)')
stamp(3, 4)
a.e('s_barrier')
stamp(4, 4)
for q in range(4):
    a.e('ds_read_b128 %s, v7 offset:%d', vr(AC2 + 16 + 4 * q, 4), q * 1024)
a.e('v_cmp_eq_u32 vcc, s%d, v%d', sIDX, VROW)
a.e('s_and_saveexec_b64 s[68:69], vcc')
a.e('s_cbranch_execz Q_nr')
a.e('v_bfe_u32 v8, v2, 4, 1')
a.e('v_lshlrev_b32 v8, 6, v8')
a.e('v_lshrrev_b32 v5, 5, v2')
a.e('v_lshl_add_u32 v8, v5, 5, v8')
a.e('v_add_u32 v8, %d, v8', L_YS + 2048)
for q in range(4):
    a.e('ds_read_b128 %s, v8 offset:%d', vr(40 + 4 * q, 4), (q >> 1) * 128 + (q & 1) * 16)
a.e('s_waitcnt lgkmcnt(0)')
for q in range(8):
    a.e('v_lshlrev_b32 v%d, 16, v%d', T2 + 2 * q, XO + q)
    a.e('v_and_b32 v%d, 0xffff0000, v%d', T2 + 2 * q + 1, XO + q)
for r in range(16):
    a.e('v_add_f32 v%d, v%d, v%d', T2 + r, T2 + r, 40 + r)
    a.e('v_cvt_pk_bf16_f32 v%d, 0, v%d', T2 + r, T2 + r)
    a.e('v_mul_f32 v%d, v%d, v%d', T2 + r, T2 + r, OM)
    a.e('v_cvt_pk_bf16_f32 v%d, 0, v%d', T2 + r, T2 + r)
a.e('Q_nr:')
a.e('s_mov_b64 exec, s[68:69]')
AP = 40
for q in range(4):
    a.e('s_waitcnt lgkmcnt(%d)', 3 - q)
    for h in range(2):
        r = AC2 + 4 * q + 2 * h
        a.e('v_pk_add_f32 %s, %s, %s', vr(r, 2), vr(r, 2), vr(r + 16, 2))
    for h in range(2):
        r = AC2 + 4 * q + 2 * h
        a.e('v_cvt_pk_bf16_f32 v%d, v%d, v%d', AP + 2 * q + h, r, r + 1)
nop(1)
for k in range(2):
    for h in range(2):
        a.e('v_permlane16_swap_b32 v%d, v%d', AP + 4 * k + h, AP + 4 * k + 2 + h)
for k in range(2):
    F = AC2 + 8 * k
    for q in range(4):
        a.e('v_lshlrev_b32 v%d, 16, v%d', F + 2 * q, AP + 4 * k + q)
        a.e('v_and_b32 v%d, 0xffff0000, v%d', F + 2 * q + 1, AP + 4 * k + q)
    for q in range(4):
        a.e('v_pk_mul_f32 %s, %s, %s', vr(F + 2 * q, 2), vr(F + 2 * q, 2), vr(GR + 2, 2))
    for r in range(8):
        a.e('v_cvt_pk_bf16_f32 v%d, 0, v%d', F + r, F + r)
    for q in range(4):
        a.e('v_pk_add_f32 %s, %s, %s', vr(F + 2 * q, 2), vr(F + 2 * q, 2), vr(T2 + 8 * k + 2 * q, 2))
    for q in range(4):
        a.e('v_cvt_pk_bf16_f32 v%d, v%d, v%d', 48 + 4 * k + q, F + 2 * q, F + 2 * q + 1)
    a.e('buffer_store_dwordx4 %s, v%d, %s, 0 offen offset:%d nt', vr(48 + 4 * k, 4), VX, sr(S_OUT, 4), 64 * k)
stamp(5, 4)
DIAG = os.environ.get('DIAG', '')
if DIAG:
    di, dw, dg = [int(x) for x in DIAG.split(',')]
    a.e('s_waitcnt vmcnt(0)')
    a.e('s_memrealtime s[64:65]')
    a.e('s_waitcnt lgkmcnt(0)')
    a.e('s_sub_u32 s66, s%d, s80', 80 + 2 * di if di < 11 else 64)
    a.e('s_cmp_eq_u32 s3, %d', dw)
    a.e('s_cselect_b32 s66, s66, 0')
    if dg >= 0:
        a.e('s_cmp_eq_u32 s2, %d', dg)
        a.e('s_cselect_b32 s66, s66, 0')
    a.e('s_lshl_b32 s66, s66, 1')
    a.e('s_add_u32 s66, s66, 6000')
    a.e('DIAG_spin:')
    a.e('s_memrealtime s[64:65]')
    a.e('s_waitcnt lgkmcnt(0)')
    a.e('s_sub_u32 s64, s64, s80')
    a.e('s_cmp_lt_u32 s64, s66')
    a.e('s_cbranch_scc1 DIAG_spin')
elif STAMPS:
    a.e('s_waitcnt vmcnt(0)')
    a.e('s_memrealtime s[64:65]')
    a.e('s_waitcnt lgkmcnt(0)')
    a.e('s_lshl_b32 s66, s2, 3')
    a.e('s_add_u32 s66, s66, s3')
    a.e('s_lshl_b32 s66, s66, 6')
    a.e('s_add_u32 s66, s66, %d', WS_ST)
    a.e('v_mov_b32 v1, s66')
    a.e('s_mov_b64 exec, 1')
    for i in range(12):
        a.e('v_mov_b32 v2, s%d', 80 + 2 * i if i < 11 else 64)
        a.e('buffer_store_dword v2, v1, %s, 0 offen offset:%d', WSR, 4 * i)
        a.e('s_nop 1')
a.e('END:')
a.e('s_endpgm')
for g in range(8):
    a.e('Q_rt%d:', g)
    a.e('s_mov_b32 s59, 0')
    o_soff(g, 67)
    a.e('Q_rl%d:', g)
    if STAMPS == 7:
        a.e('s_add_u32 s100, s100, %d', 1 << (4 * g))
    a.e('s_waitcnt vmcnt(0)')
    a.e('s_add_u32 s59, s59, 1')
    a.e('s_cmp_ge_u32 s59, %d', SPIN)
    spin_rec(7)
    a.e('s_cbranch_scc1 Q_rd%d', g)
    a.e('s_sleep %d', E('OSL', 1))
    o_loads(g, False, 67)
    a.e('s_waitcnt vmcnt(0)')
    emit(o_check(g))
    a.e('s_cbranch_vccnz Q_rl%d', g)
    a.e('Q_rd%d:', g)
    if g + 1 < 8:
        o_soff(g + 1, 67)
        o_loads(g + 1, False, 67)
    a.e('s_branch Q_go%d', g)
a.e('CODE_END:')

hdr = open(os.path.join(os.path.dirname(os.path.abspath(__file__)), '..', NAME + '.s.ref')).read().split('; Override launch')[0]
out = hdr + '; @launch grid=(256,1,1) block=(512,1,1) lds=%d\n' % LDS + a.text() + '.section .rodata,"a"\n' + kd(kn, 256)
path = sys.argv[1] if len(sys.argv) > 1 else os.path.join(os.path.dirname(os.path.abspath(__file__)), '..', NAME + '.s')
open(path, 'w').write(out)
```

```python
import sys, os
sys.path.insert(0, os.path.dirname(os.path.abspath(__file__)))
from asmlib import *

NAME = 'gated_mix__linear_attn_block__moe_arch_mod__prompt'
E = lambda k, d: int(os.environ.get(k, str(d)))
EXP = os.environ.get('EXP', '')
STAMPS = E('STAMPS', 0)

WS_O = 0
WS_KV = 4 << 20
WS_Z = WS_KV + (1 << 20)
WS_HU = WS_Z + 65536
WS_YP = WS_HU + 16 * 32768
WS_G = WS_YP + 16 * 64 * 256
WS_KEY = WS_G + 32768
WS_ST = 16 << 20
WS_BYTES = 268435456
WT = os.environ.get('WT', ' sc0 sc1')
RD1 = os.environ.get('RD1', ' sc1')
RD = ' sc1'

SLOT = 40960
BQ, BK, BV = 16384, 24576, 32768
S3 = 3 * SLOT
MISC = S3 + 32768
L_FLG = MISC
L_HS = MISC + 64
L_YS = MISC + 64 + 1280
L_KVF = MISC + 4096 - 256
L_ZF = L_KVF
L_KF = L_KVF + 256
LDS = 163840
assert L_YS + 2304 <= L_KVF and L_KF + 4096 <= LDS
L_KST = 0
L_QH = S3 + 16384
L_Y4 = S3 + 24576
L_VST = SLOT + BK

S_X, S_W, S_WS, S_WO, S_WV, S_MW, S_WD, S_OUT, S_DBG = 8, 12, 16, 20, 24, 28, 32, 36, 40
WSR = sr(S_WS, 4)
sW, sRT, sCT, sRT2, sCT2, sHW, sHALF, sL2E, sEPS = 3, 4, 5, 6, 7, 44, 45, 46, 47
sKEY, sIDX, sPEND, sSLO, sSHI, sCG, sKQ = 74, 75, 76, 77, 78, 79, 73
sROT = 76
sDCT = 77
XL = E('XL', 1)
LOG2E = 0x3fb8aa3b
EPS6 = 0x358637bd
SPIN = E("SPIN", 200000)

a = Asm()
nstamp = [0]


def stamp(idx, lvl=1):
    if STAMPS == lvl or (STAMPS and idx == 0):
        a.e('s_memrealtime s[%d:%d]', 80 + 2 * idx, 81 + 2 * idx)


def spin_rec(site):
    if not E('SOD', 0):
        return
    lab = a.label('SO')
    a.e('s_cbranch_scc0 %s', lab)
    a.e('v_mov_b32 v254, %d', 4 * site)
    a.e('v_mov_b32 v253, s2')
    a.e('v_add_u32 v253, 1000, v253')
    a.e('buffer_store_dword v253, v254, s[40:43], 0 offen sc0 sc1')
    a.e('s_cmp_eq_u32 s2, s2')
    a.e('%s:', lab)


def nop(n):
    while n > 0:
        k = min(n, 16)
        a.e('s_nop %d', k - 1)
        n -= k


def srd2(d, nbytes):
    a.e('s_mov_b32 s%d, 0x%x', d + 2, nbytes)
    a.e('s_mov_b32 s%d, 0x00020000', d + 3)


def mfma(d, x, y, c=None):
    return 'v_mfma_f32_16x16x32_bf16 %s, %s, %s, %s' % (vr(d, 4), vr(x, 4), vr(y, 4), vr(d, 4) if c is None else c)


def phi_packed(src, dst, n, t, mn=None):
    L = []
    for j in range(n):
        t0 = t + 4 * (j & 1)
        e0 = t0 + 2
        L += ['v_lshlrev_b32 v%d, 16, v%d' % (t0, src + j),
              'v_and_b32 v%d, 0xffff0000, v%d' % (t0 + 1, src + j),
              'v_pk_mul_f32 %s, %s, s[70:71]' % (vr(e0, 2), vr(t0, 2)),
              'v_pk_add_f32 %s, %s, 1.0 op_sel_hi:[1,0]' % (vr(t0, 2), vr(t0, 2)),
              'v_exp_f32 v%d, v%d clamp' % (e0, e0),
              'v_exp_f32 v%d, v%d clamp' % (e0 + 1, e0 + 1),
              'v_max_f32 v%d, v%d, v%d' % (t0, t0, e0),
              'v_max_f32 v%d, v%d, v%d' % (t0 + 1, t0 + 1, e0 + 1)]
        if mn is not None:
            L.append(('v_min_f32 v%d, v%d, v%d' % (mn, t0, t0 + 1)) if j == 0 else ('v_min3_f32 v%d, v%d, v%d, v%d' % (mn, t0, t0 + 1, mn)))
        L.append('v_cvt_pk_bf16_f32 v%d, v%d, v%d' % (dst + j, t0, t0 + 1))
    out = []
    per = len(L) // n
    for j in range(0, n, 2):
        A, B = L[j * per:(j + 1) * per], L[(j + 1) * per:(j + 2) * per]
        out += A[:6] + B[:6] + A[6:] + B[6:]
    return out


def phi_eps(dst, n, t):
    for j in range(n):
        a.e('v_lshlrev_b32 v%d, 16, v%d', t, dst + j)
        a.e('v_and_b32 v%d, 0xffff0000, v%d', t + 1, dst + j)
        a.e('v_add_f32 v%d, s%d, v%d', t, sEPS, t)
        a.e('v_add_f32 v%d, s%d, v%d', t + 1, sEPS, t + 1)
        a.e('v_cvt_pk_bf16_f32 v%d, v%d, v%d', dst + j, t, t + 1)


def emit(L):
    for x in L:
        a.e(x)


def wave_reduce(regs, op, stmp):
    pats = ['quad_perm:[1,0,3,2]', 'quad_perm:[2,3,0,1]', 'row_half_mirror', 'row_mirror']
    nop(2)
    for p in pats:
        if len(regs) < 3:
            nop(2)
        for r in regs:
            a.e('%s_dpp v%d, v%d, v%d %s row_mask:0xf bank_mask:0xf', op, r, r, r, p)
    nop(2)
    for r in regs:
        for q in range(4):
            a.e('v_readlane_b32 s%d, v%d, %d', stmp + q, r, 16 * q)
        nop(2)
        a.e('v_mov_b32 v%d, s%d', r, stmp)
        for q in range(1, 4):
            a.e('%s v%d, s%d, v%d', op, r, stmp + q, r)


def red4(r):
    nop(2)
    a.e('v_permlane32_swap_b32 v%d, v%d', r, r + 1)
    a.e('v_permlane32_swap_b32 v%d, v%d', r + 2, r + 3)
    a.e('v_add_f32 v%d, v%d, v%d', r, r, r + 1)
    a.e('v_add_f32 v%d, v%d, v%d', r + 2, r + 2, r + 3)
    nop(2)
    a.e('v_permlane16_swap_b32 v%d, v%d', r, r + 2)
    a.e('v_add_f32 v%d, v%d, v%d', r, r, r + 2)
    for p in ['quad_perm:[1,0,3,2]', 'quad_perm:[2,3,0,1]', 'row_half_mirror', 'row_mirror']:
        nop(2)
        a.e('v_add_f32_dpp v%d, v%d, v%d %s row_mask:0xf bank_mask:0xf', r, r, r, p)


def red8(acc, t, vlane):
    a.e('v_and_b32 v%d, 8, v%d', t, vlane)
    a.e('v_cmp_eq_u32 vcc, 0, v%d', t)
    nop(2)
    for j in range(4):
        a.e('v_cndmask_b32 v%d, v%d, v%d, vcc', t + j, acc + j, acc + 4 + j)
        a.e('v_cndmask_b32 v%d, v%d, v%d, vcc', acc + j, acc + 4 + j, acc + j)
    nop(1)
    for j in range(4):
        a.e('v_add_f32_dpp v%d, v%d, v%d row_ror:8 row_mask:0xf bank_mask:0xf', acc + j, t + j, acc + j)
    nop(2)
    for j in range(2):
        a.e('v_permlane16_swap_b32 v%d, v%d', acc + j, acc + 2 + j)
    for j in range(2):
        a.e('v_add_f32 v%d, v%d, v%d', acc + j, acc + j, acc + 2 + j)
    nop(2)
    a.e('v_permlane32_swap_b32 v%d, v%d', acc, acc + 1)
    a.e('v_add_f32 v%d, v%d, v%d', acc, acc, acc + 1)


def red8_col(dst, t, vlane):
    a.e('v_and_b32 v%d, 7, v%d', dst, vlane)
    a.e('v_lshlrev_b32 v%d, 5, v%d', dst, dst)
    a.e('v_bfe_u32 v%d, v%d, 3, 1', t, vlane)
    a.e('v_lshl_add_u32 v%d, v%d, 4, v%d', dst, t, dst)
    a.e('v_bfe_u32 v%d, v%d, 4, 1', t, vlane)
    a.e('v_lshl_add_u32 v%d, v%d, 3, v%d', dst, t, dst)
    a.e('v_lshrrev_b32 v%d, 5, v%d', t, vlane)
    a.e('v_lshl_add_u32 v%d, v%d, 2, v%d', dst, t, dst)


def gemv_rows(w, xp, n, acc, t, dot):
    x = xp + (n >> 1)
    L = []
    if dot:
        L.append(('v_and_b32 v%d, 0xffff, v%d' if n % 2 == 0 else 'v_lshrrev_b32 v%d, 16, v%d') % (t, x))
        L.append(('v_lshlrev_b32 v%d, 16, v%d' if n % 2 == 0 else 'v_and_b32 v%d, 0xffff0000, v%d') % (t + 1, x))
        for q in range(4):
            L.append('v_dot2_f32_bf16 v%d, v%d, v%d, v%d' % (acc + 2 * q, w + q, t, acc + 2 * q))
            L.append('v_dot2_f32_bf16 v%d, v%d, v%d, v%d' % (acc + 2 * q + 1, w + q, t + 1, acc + 2 * q + 1))
    else:
        L.append(('v_lshlrev_b32 v%d, 16, v%d' if n % 2 == 0 else 'v_and_b32 v%d, 0xffff0000, v%d') % (t, x))
        for q in range(4):
            L += ['v_lshlrev_b32 v%d, 16, v%d' % (t + 1, w + q), 'v_and_b32 v%d, 0xffff0000, v%d' % (t + 2, w + q),
                  'v_fmac_f32 v%d, v%d, v%d' % (acc + 2 * q, t + 1, t), 'v_fmac_f32 v%d, v%d, v%d' % (acc + 2 * q + 1, t + 2, t)]
    return L


kn = NAME + '_kernel'
a.e('.amdgcn_target "amdgcn-amd-amdhsa--gfx950"\n.text')
a.e('.globl %s\n.p2align 8\n.type %s,@function\n%s:' % (kn, kn, kn))
a.e('s_load_dwordx2 s[12:13], s[0:1], 8')
a.e('s_load_dwordx2 s[8:9], s[0:1], 0')
a.e('s_getpc_b64 s[64:65]')
a.e('PC0:')
if not E('NOC1', 0):
    a.e('v_min_u32 v1, 15, v0')
    a.e('v_lshlrev_b32 v1, 6, v1')
    a.vm_issue('code', 'global_load_dword v246, v1, s[64:65]')
a.e('s_cmp_ge_u32 s2, 256')
a.e('s_cbranch_scc1 END')
stamp(0)
a.e('v_lshrrev_b32 v1, 6, v0')
a.e('v_and_b32 v2, 63, v0')
a.e('s_load_dwordx8 s[48:55], s[0:1], 32')
a.e('v_readfirstlane_b32 s3, v1')
a.e('s_load_dwordx8 s[56:63], s[0:1], 64')
a.e('s_load_dwordx2 s[20:21], s[0:1], 16')
a.e('s_and_b32 s66, s2, 0xf8')
a.e('v_and_b32 v1, 31, v0')
a.e('v_lshl_add_u32 v1, s66, 2, v1')
a.e('v_lshlrev_b32 v1, 6, v1')
a.e('v_min_u32 v1, CODE_END-PC0-4, v1')
a.vm_issue('code', 'global_load_dword v247, v1, s[64:65]')
VOA, VOB = 4, 5
a.e('s_and_b32 s64, s2, 7')
a.e('s_lshr_b32 s65, s2, 3')
a.e('s_and_b32 s44, s3, 3')
a.e('s_lshr_b32 s45, s3, 2')
a.e('s_and_b32 s66, s64, 6')
a.e('s_lshl_b32 s5, s66, 1')
a.e('s_add_u32 s%d, s66, s65', sROT)
a.e('s_lshl_b32 s%d, s%d, 1', sROT, sROT)
a.e('s_lshr_b32 s66, s65, 3')
a.e('s_add_u32 s5, s5, s66')
if os.environ.get('ROT'):
    ra, rb, rx1, rx2 = [int(x) for x in os.environ['ROT'].split(',')]
    a.e('s_mul_i32 s%d, s66, %d', sROT, rb)
    a.e('s_and_b32 s66, s65, 7')
    a.e('s_mul_i32 s66, s66, %d', ra)
    a.e('s_add_u32 s%d, s%d, s66', sROT, sROT)
    a.e('s_and_b32 s66, s64, 1')
    a.e('s_mul_i32 s66, s66, %d', rx1)
    a.e('s_add_u32 s%d, s%d, s66', sROT, sROT)
    a.e('s_lshr_b32 s66, s64, 1')
    a.e('s_mul_i32 s66, s66, %d', rx2)
    a.e('s_add_u32 s%d, s%d, s66', sROT, sROT)
a.e('v_lshrrev_b32 v6, 3, v2')
a.e('v_lshl_add_u32 v6, s44, 3, v6')
a.e('v_lshrrev_b32 v8, 4, v2')
a.e('v_and_b32 v10, 7, v2')
a.e('s_and_b32 s67, s44, 1')
a.e('v_mul_u32_u24 v7, 6144, v6')
a.e('v_and_b32 v9, 1, v8')
a.e('v_lshl_add_u32 v9, v9, 1, s67')
a.e('v_lshlrev_b32 v9, 1, v9')
a.e('v_xor_b32 v9, v9, v10')
a.e('v_lshl_add_u32 v7, v9, 4, v7')
a.e('v_lshl_add_u32 v%d, s5, 7, v7', VOB)
srd2(S_W, 6291456)
a.e('s_lshl_b32 s72, s44, 10')
a.e('s_lshl_b32 s66, s45, 12')
a.e('s_add_u32 s69, s72, s66')
a.e('s_add_u32 s68, s69, s66')


def ks_idx(stage, d):
    if XL and stage == 15:
        a.e('s_mov_b32 s%d, s5', d)
        return
    if XL:
        a.e('s_cmp_le_u32 s%d, %d', sDCT, stage)
        a.e('s_addc_u32 s%d, s%d, %d', d, sROT, stage)
    else:
        a.e('s_add_u32 s%d, s%d, %d', d, sROT, stage)
    a.e('s_and_b32 s%d, s%d, 15', d, d)


def ks_regs(stage, da, db):
    ks_idx(stage, db)
    a.e('s_lshl_b32 s%d, s%d, 7', da, db)
    a.e('s_mul_i32 s%d, s%d, 393216', db, db)


for st in range(2):
    if st == 0 and XL:
        a.e('s_sub_u32 s%d, s5, s%d', sDCT, sROT)
        a.e('s_and_b32 s%d, s%d, 15', sDCT, sDCT)
    ks_idx(st, 70)
    a.e('s_lshl_b32 s71, s70, 1')
    a.e('s_add_u32 s71, s71, s45')
    a.e('s_mul_i32 s71, s71, 196608')
    if st == 0:
        a.e('s_waitcnt lgkmcnt(0)')
    for ty in (1, 2, 0):
        a.e('s_add_u32 m0, s69, %d', st * SLOT + BQ + ty * 8192)
        a.e('s_add_u32 s66, s71, %d', ty * 2048)
        a.vm_issue('d%d' % st, 'buffer_load_dwordx4 v%d, %s, s66 offen lds', VOB, sr(S_W, 4))
    if st == 0:
        a.e('s_and_b32 s4, s64, 1')
        a.e('s_lshl_b32 s4, s4, 3')
        a.e('s_and_b32 s66, s65, 7')
        a.e('s_add_u32 s4, s4, s66')
        a.e('v_lshl_add_u32 v7, s4, 7, v6')
        a.e('v_lshlrev_b32 v7, 11, v7')
        a.e('v_lshl_add_u32 v9, s67, 2, v8')
        a.e('v_xor_b32 v9, v9, v10')
        a.e('v_lshl_add_u32 v%d, v9, 4, v7', VOA)
        srd2(S_X, 4194304)
    a.e('s_lshl_b32 s70, s70, 7')
    a.e('s_lshl_b32 s66, s45, 17')
    a.e('s_add_u32 s70, s70, s66')
    for q in range(2):
        a.e('s_add_u32 m0, s68, %d', st * SLOT + q * 4096)
        a.e('s_add_u32 s66, s70, %d', q * 65536)
        a.vm_issue('d%d' % st, 'buffer_load_dwordx4 v%d, %s, s66 offen lds', VOA, sr(S_X, 4))
    if st == 0:
        a.e('s_barrier')
for d, b in ((S_WS, 62), (S_WD, 54), (S_OUT, 58), (S_DBG, 60)):
    a.e('s_mov_b32 s%d, s%d', d, b)
    a.e('s_mov_b32 s%d, s%d', d + 1, b + 1)
srd2(S_WS, WS_BYTES); srd2(S_WD, 7340032); srd2(S_OUT, 4194304); srd2(S_DBG, 256); srd2(S_WO, 2097152)
a.e('s_bitcmp0_b32 s44, 0')
a.e('s_cselect_b32 s24, s48, s56')
a.e('s_cselect_b32 s25, s49, s57')
srd2(S_WV, 2048)
a.e('s_bitcmp0_b32 s44, 0')
a.e('s_cselect_b32 s28, s50, s52')
a.e('s_cselect_b32 s29, s51, s53')
srd2(S_MW, 7340032)
a.e('s_lshr_b32 s66, s64, 2')
a.e('s_lshl_b32 s66, s66, 1')
a.e('s_and_b32 s67, s64, 1')
a.e('s_add_u32 s66, s66, s67')
a.e('s_lshl_b32 s67, s65, 2')
a.e('s_add_u32 s66, s66, s67')
a.e('s_add_u32 s66, s66, 96')
a.e('s_bitcmp0_b32 s64, 1')
a.e('s_cselect_b32 s67, 32, 0')
a.e('s_add_u32 s66, s66, s67')
a.e('s_cmp_lt_u32 s65, 24')
a.e('s_cselect_b32 s67, s2, s66')
a.e('s_cmp_ge_u32 s67, 224')
a.e('s_cselect_b32 s30, 0, s30')
a.e('s_cselect_b32 s34, 0, s34')
a.e('s_lshr_b32 s%d, s67, 2', sCG)
a.e('s_and_b32 s%d, s67, 3', sKQ)
a.e('s_and_b32 s6, s64, 3')
a.e('s_lshl_b32 s6, s6, 2')
a.e('s_and_b32 s66, s65, 3')
a.e('s_add_u32 s6, s6, s66')
a.e('s_lshr_b32 s7, s64, 2')
a.e('s_lshl_b32 s7, s7, 3')
a.e('s_lshr_b32 s66, s65, 2')
a.e('s_add_u32 s7, s7, s66')
if E('MAP2', 1) == 1:
    a.e('s_mov_b32 s6, s4')
    a.e('s_mov_b32 s7, s5')
if E('MAP2', 1) == 2:
    a.e('s_lshl_b32 s6, s64, 1')
    a.e('s_and_b32 s66, s65, 1')
    a.e('s_add_u32 s6, s6, s66')
    a.e('s_lshr_b32 s7, s65, 1')
a.e('s_mov_b32 s%d, 0x%x', sL2E, LOG2E)
a.e('s_mov_b32 s%d, 0x%x', sEPS, EPS6)
a.e('s_cmp_ge_u32 s3, 4')
a.e('s_cbranch_scc1 HELP')
vm_entry = list(a.vm)

OB, WOF, AC2, XO, GR, OM, T2, YL = 96, 192, 224, 144, 152, 153, 16, 32
VKV, VZ, VWO, VX, VROW, VG, SEL0 = 88, 89, 90, 91, 92, 93, 94
VL16, SEL, VPR = 9, 136, 15
PQ = 24
sM0 = 52


def post_addr(role, o=0):
    W, X, R_, G = VWO + o, VX + o, VROW + o, VG + o
    L = [
         'v_lshrrev_b32 v12, 3, v2', 's_lshl_b32 s67, s44, 3', 'v_add_u32 v12, s67, v12', 'v_lshlrev_b32 v12, 11, v12',
         'v_lshrrev_b32 v13, 4, v2', 'v_lshlrev_b32 v13, 1, v13', 'v_and_b32 v%d, 7, v2' % W, 'v_xor_b32 v13, v13, v%d' % W,
         'v_lshl_add_u32 v12, v13, 4, v12', 's_lshl_b32 s66, s7, 7', 'v_add_u32 v%d, s66, v12' % W,
         's_lshl_b32 s66, s6, 7', 's_lshl_b32 s67, s44, 5', 's_add_u32 s66, s66, s67', 's_lshl_b32 s67, s45, 4', 's_add_u32 s66, s66, s67',
         'v_and_b32 v%d, 15, v2' % R_, 'v_add_u32 v%d, s66, v%d' % (R_, R_), 'v_lshlrev_b32 v%d, 11, v%d' % (X, R_),
         'v_bfe_u32 v12, v2, 4, 1', 'v_lshl_add_u32 v%d, v12, 5, v%d' % (X, X), 'v_lshrrev_b32 v12, 5, v2',
         'v_lshl_add_u32 v%d, v12, 4, v%d' % (X, X), 's_lshl_b32 s66, s7, 7', 'v_add_u32 v%d, s66, v%d' % (X, X),
         'v_lshrrev_b32 v%d, 2, v%d' % (G, R_), 'v_lshlrev_b32 v%d, 6, v%d' % (G, G), 'v_and_b32 v12, 3, v2',
         'v_lshl_add_u32 v%d, v12, 2, v%d' % (G, G),
         's_lshl_b32 s66, s6, %d' % E('WSH', 1), 's_and_b32 s66, s66, %d' % E('WOO', 6), 's_lshl_b32 s67, s7, %d' % E('OSH', 3), 's_add_u32 s66, s66, s67', 's_and_b32 s66, s66, 7',
         's_lshl_b32 s%d, s66, 18' % sM0,
         's_lshr_b32 s49, s44, 1', 's_and_b32 s66, s44, 1', 's_lshl_b32 s66, s66, 2', 's_lshl_b32 s67, s45, 1', 's_add_u32 s66, s66, s67',
         's_lshl_b32 s67, s4, 3', 's_add_u32 s66, s66, s67', 's_lshl_b32 s66, s66, 5', 's_lshl_b32 s67, s5, 1', 's_add_u32 s66, s66, s67',
         's_add_u32 s66, s66, s49', 's_lshl_b32 s60, s66, 10', 's_add_u32 s61, s60, 32768']
    if role == 'c':
        L += ['s_lshl_b32 s58, s5, 2', 's_add_u32 s58, s58, s44', 's_lshl_b32 s66, s58, 14', 's_add_u32 s66, s66, %d' % WS_KV,
              'v_lshlrev_b32 v12, 4, v2', 'v_add_u32 v%d, s66, v12' % (VKV + o),
              's_lshl_b32 s66, s58, 10', 's_add_u32 s66, s66, %d' % WS_Z, 'v_and_b32 v12, 15, v2', 'v_lshlrev_b32 v12, 6, v12',
              'v_lshrrev_b32 v13, 4, v2', 'v_lshl_add_u32 v12, v13, 4, v12', 'v_add_u32 v%d, s66, v12' % (VZ + o),
              's_lshr_b32 s57, s4, 3', 's_xor_b32 s57, s57, s4', 's_and_b32 s57, s57, 1',
              's_lshl_b32 s57, s57, 13',
              'v_bfe_u32 v12, v2, 2, 2', 'v_cmp_eq_u32 vcc, v12, v13', 'v_mov_b32 v13, 0x3f80',
              'v_and_b32 v12, 1, v2', 'v_lshlrev_b32 v12, 4, v12', 'v_lshlrev_b32 v12, v12, v13', 'v_cndmask_b32 v12, 0, v12, vcc',
              'v_and_b32 v13, 2, v2', 'v_cmp_eq_u32 vcc, 0, v13', 's_nop 1',
              'v_cndmask_b32 v%d, 0, v12, vcc' % (SEL0 + o), 'v_cndmask_b32 v%d, v12, 0, vcc' % (SEL0 + 1 + o)]
    return L


VAB, VBB, VA, VB = 4, 6, 8, 10
FR = [16, 56]
QA, KA, VV = 96, 128, 160
a.e('s_and_b32 s48, s3, 1')
a.e('s_lshr_b32 s49, s3, 1')
a.e('v_and_b32 v3, 15, v2')
a.e('s_lshl_b32 s66, s48, 6')
a.e('v_add_u32 v3, s66, v3')
a.e('v_lshlrev_b32 v3, 7, v3')
a.e('v_bfe_u32 v9, v2, 1, 3')
a.e('v_lshrrev_b32 v15, 4, v2')
a.e('v_xor_b32 v9, v9, v15')
for u in range(2):
    a.e('v_xor_b32 v12, %d, v9', 4 * u)
    a.e('v_lshl_add_u32 v%d, v12, 4, v3', VAB + u)
a.e('v_bfe_u32 v12, v2, 2, 2')
a.e('v_lshl_add_u32 v13, v15, 3, v12')
a.e('v_lshlrev_b32 v13, 7, v13')
a.e('v_lshrrev_b32 v12, 1, v12')
a.e('v_xor_b32 v12, s49, v12')
a.e('v_lshl_add_u32 v13, v12, 6, v13')
a.e('v_and_b32 v12, 3, v2')
a.e('v_lshl_add_u32 v13, v12, 3, v13')
a.e('v_add_u32 v13, %d, v13', BQ)
a.e('v_and_b32 v12, 1, v15')
for nb in range(2):
    a.e('v_xor_b32 v14, %d, v12', nb)
    a.e('v_lshl_add_u32 v%d, v14, 5, v13', VBB + nb)
for q in range(4):
    a.e('v_mov_b32 v%d, v%d', VA + q, VAB + q)
for r in range(96, 192):
    a.e('v_mov_b32 v%d, 0', r)
a.e('v_lshlrev_b32 v12, 2, v2')
a.e('v_and_b32 v12, 63, v12')
a.e('v_add_u32 v12, %d, v12', L_FLG)
a.e('ds_write_b32 v12, v96')
a.e('s_mov_b32 s70, 0x%x', LOG2E)
a.e('s_mov_b32 s71, 0x%x', LOG2E)
emit(post_addr('c', 160))


def accreg(i, j):
    return (QA, KA, VV)[j >> 1] + 8 * i + 4 * (j & 1)


def rdA(dst, va, i, off=0):
    return 'ds_read_b128 %s, v%d offset:%d' % (vr(dst, 4), va, off + i * 2048)


def rdB(dst, vb, j, u, tt, off=0):
    return 'ds_read_b64_tr_b16 %s, v%d offset:%d' % (vr(dst + 2 * tt, 2), vb + (j & 1), off + (j >> 1) * 8192 + u * 4096 + tt * 512)


def full_reads(u, buf):
    f = FR[buf]
    L = [rdB(f + 16, VB, 0, u, 0), rdB(f + 16, VB, 0, u, 1)] + [rdA(f + 4 * i, VA + u, i) for i in range(4)]
    for j in range(1, 6):
        L += [rdB(f + 16 + 4 * j, VB, j, u, 0), rdB(f + 16 + 4 * j, VB, j, u, 1)]
    return L


def mm(i, j, A, B):
    return mfma(accreg(i, j), B, A) if j < 2 else mfma(accreg(i, j), A, B)


def full_mfmas(buf):
    f = FR[buf]
    return [mm(i if j % 2 == 0 else 3 - i, j, f + 4 * (i if j % 2 == 0 else 3 - i), f + 16 + 4 * j) for j in range(6) for i in range(4)]


FULL_NEED = [3, 4, 5, 6] + [8] * 4 + [10] * 4 + [12] * 4 + [14] * 4 + [16] * 4
a.e('s_mov_b32 s50, 0')
a.e('s_mov_b32 s51, 0')
a.vm_wait('d0', 'lgkmcnt(0)')
a.e('s_barrier')
stamp(2)
emit(full_reads(0, 0))
a.e('.p2align 6')
a.e('LOOP:')
BARP = E('BARP', 6)
for u in range(2):
    M = full_mfmas(u)
    R = full_reads(u ^ 1, u ^ 1)
    first = 0 if u == 0 else BARP
    issued = 0; done = 0
    for i in range(24):
        if u == 1 and i == first:
            a.e('s_waitcnt vmcnt(0) lgkmcnt(0)')
            done = 16
            a.e('s_barrier')
        if FULL_NEED[i] > done:
            a.e('s_waitcnt lgkmcnt(%d)', min(15, 16 - FULL_NEED[i] + issued))
            done = FULL_NEED[i]
        a.e(M[i])
        if u == 1 and i == 0:
            a.e('s_add_u32 s50, s50, %d', SLOT)
            a.e('s_cmp_eq_u32 s50, %d', 3 * SLOT)
            a.e('s_cselect_b32 s50, 0, s50')
        if u == 1 and 1 <= i <= 4:
            a.e('v_add_u32 v%d, s50, v%d', VA + i - 1, VAB + i - 1)
        if i >= first and issued < 16:
            a.e(R[issued]); issued += 1
a.e('s_add_u32 s51, s51, 1')
a.e('s_cmp_lt_u32 s51, 13')
a.e('s_cbranch_scc1 LOOP')
stamp(3)

AR = 192
BB = [16, 24, 32]
PKT = 40
T15A, T15B = 12, 14
A13 = FR[1]


class Unit:
    def __init__(self, reads, mf, need):
        self.reads, self.mf, self.need = reads, mf, need


def kvq_unit(st, u, js, bufB, Areg, loadA):
    if st == 13:
        va, vb, off, offq = VA + u, VB, 0, 0
    elif st == 14:
        va, vb, off, offq = VA + u, VB, SLOT, SLOT
    else:
        va, vb, off, offq = T15A + u, T15B, 0, None
    R, M, need = [], [], []
    pos = {}
    for k, j in enumerate(js):
        if st == 15 and j < 2:
            vbx, o = VBB, 0
        else:
            vbx, o = vb, off
        R += [rdB(bufB + 4 * k, vbx, j, u, 0, o), rdB(bufB + 4 * k, vbx, j, u, 1, o)]
        pos[j] = len(R)
        if k == 0 and loadA:
            for i in range(4):
                R.append(rdA(Areg + 4 * i, va, i, off))
                pos['A%d' % i] = len(R)
    for k, j in enumerate(js):
        for ii in range(4):
            i = ii if k % 2 == 0 else 3 - ii
            M.append(mm(i, j, Areg + 4 * i, bufB + 4 * k))
            need.append(max(pos[j], pos.get('A%d' % i, 0)))
    return Unit(R, M, need)


units = [Unit(full_reads(0, 0), full_mfmas(0), FULL_NEED),
         kvq_unit(13, 1, [2, 3, 4, 5], A13 + 16, A13, True)]
seq = [(14, 0), (14, 1), (15, 0), (15, 1)]
nb = 0
TORD = os.environ.get('TORD', 'K0,K1,Qh,K2,K3,V0,V1,V2,V3,Q0,Q1,Q2,Q3').split(',')
for t in TORD:
    js = {'K': [2, 3], 'V': [4, 5], 'Q': [0, 1]}[t[0]]
    if t[1] == 'h':
        units.append(kvq_unit(13, 1, js, BB[nb % 3], A13, False))
    else:
        n = int(t[1])
        units.append(kvq_unit(seq[n][0], seq[n][1], js, BB[nb % 3], AR + 16 * n, t[0] == 'K'))
    nb += 1
UK = 2 + TORD.index('K3') + 1
UV = 2 + TORD.index('V3') + 1
UB14 = 2 + TORD.index('K2')

VST_, VFL = 3, 1


def pack_blocks(base, dst):
    L = []
    for ip in range(2):
        for b in range(2):
            for h in range(2):
                s = base + 8 * (2 * ip + h) + 4 * b
                for q in range(2):
                    L.append('v_cvt_pk_bf16_f32 v%d, v%d, v%d' % (dst + 8 * ip + 4 * b + 2 * h + q, s + 2 * q, s + 2 * q + 1))
    return L


def stage_writes(src, ldsbase):
    return [('DS', 'ds_write_b128 v%d, %s offset:%d' % (VST_, vr(src + 4 * k, 4), ldsbase + k * 1024)) for k in range(4)]


def phi_q(tag):
    emit(phi_packed(QP, PQ, 8, 32, 40))
    a.e('v_cmp_gt_f32 vcc, 0x3a800000, v40')
    a.e('s_cbranch_vccz %s', tag)
    phi_eps(PQ, 8, 32)
    a.e('%s:', tag)


def x_lds(t0, t1):
    return ['v_bfe_u32 v%d, v2, 4, 1' % t0, 'v_lshrrev_b32 v%d, 5, v2' % t1, 'v_lshl_add_u32 v%d, v%d, 1, v%d' % (t0, t0, t1),
            'v_bfe_u32 v%d, v2, 1, 3' % t1, 'v_xor_b32 v%d, v%d, v%d' % (t0, t0, t1), 'v_and_b32 v%d, 127, v%d' % (t1, VROW),
            'v_lshlrev_b32 v%d, 7, v%d' % (t1, t1), 'v_lshl_add_u32 v%d, v%d, 4, v%d' % (t0, t0, t1), 'v_add_u32 v%d, %d, v%d' % (t0, S3, t0),
            'v_xor_b32 v%d, 64, v%d' % (t1, t0),
            ('DS', 'ds_read_b128 %s, v%d' % (vr(XO, 4), t0)), ('DS', 'ds_read_b128 %s, v%d' % (vr(XO + 4, 4), t1))]


def x_loads():
    if XL:
        for f in x_lds(12, 13):
            a.e(f[1] if isinstance(f, tuple) else f)
        a.e('s_waitcnt lgkmcnt(0)')
        return
    for q in range(2):
        a.vm_issue('xo', 'buffer_load_dwordx4 %s, v%d, %s, 0 offen offset:%d', vr(XO + 4 * q, 4), VX, sr(S_X, 4), 64 * q)


KF, ZF, NA, DEN = 32, 40, 44, 60


def c_addr():
    a.e('s_lshl_b32 s66, s49, 11')
    a.e('s_add_u32 s66, s66, %d', L_KF)
    a.e('v_add_u32 v10, s66, v%d', VL16)
    a.e('s_lshl_b32 s66, s49, 6')
    a.e('s_add_u32 s66, s66, %d', L_ZF)
    a.e('v_lshrrev_b32 v11, 4, v2')
    a.e('v_lshlrev_b32 v11, 4, v11')
    a.e('v_add_u32 v11, s66, v11')


allrounds = [(kh, m) for m in range(8) for kh in range(2)]
WSET = [(24576, 16384), (81920, 8192), (0, 57344), (98304, 16384)]
WGRP = [(0, 0), (0, 8192), (1, 0), (2, 0), (2, 8192), (2, 16384), (3, 0), (3, 8192)]


def wo_lds(kh, m):
    st, off = WGRP[m]
    return WSET[st][0] + kh * WSET[st][1] + off


def wo_pair(r):
    kh, m = r
    a.e('s_add_u32 s67, s%d, %d', sM0, m * 262144)
    a.e('s_and_b32 s67, s67, 0x1fffff')
    for hh in range(2):
        a.e('s_add_u32 m0, s72, %d', wo_lds(kh, m) + hh * 4096)
        a.e('s_add_u32 s66, s67, %d', kh * 131072 + hh * 65536)
        a.vm_issue('wo', 'buffer_load_dwordx4 v%d, %s, s66 offen lds', VWO, sr(S_WO, 4))


R1 = E('R1', 8)
QP = 16

fill = {k: [] for k in range(len(units))}
fill[0] += ['v_add_u32 v%d, %d, v%d' % (T15A + u, S3, VAB + u) for u in range(2)]
fill[0] += ['v_add_u32 v%d, %d, v%d' % (T15B + n, S3 + 16384 - BK, VBB + n) for n in range(2)]
fill[0] += ['s_lshl_b32 s66, s3, 12', 'v_lshlrev_b32 v%d, 4, v2' % VST_, 'v_add_u32 v%d, s66, v%d' % (VST_, VST_),
            's_lshl_b32 s66, s3, 2', 's_add_u32 s66, s66, %d' % L_FLG, 'v_mov_b32 v%d, s66' % VFL, 'v_mov_b32 v0, 1']
PK_ = pack_blocks(KA, PKT)
kw = stage_writes(PKT, L_KST)
fill[0] += ['v_mov_b32 v%d, v%d' % (88 + q, 248 + q) for q in range(8)]
CP = ['s_setprio 3'] if E('CPRIO', 0) else []
CN = ['s_setprio 0'] if E('CPRIO', 0) else []
fill[UK] += CP + ['NOP8'] + PK_[0:4] + [kw[0]] + PK_[4:8] + [kw[1]] + PK_[8:12] + [kw[2]] + PK_[12:16] + [kw[3], ('DS', 'ds_write_b32 v%d, v0' % VFL)] + CN
CKL = (['v_pk_max_u16 v72, v%d, v%d' % (PKT, PKT + 1)] + ['v_pk_max_u16 v72, v72, v%d' % (PKT + k) for k in range(2, 16)] +
       ['v_add_u32 v%d, %d, v%d' % (VST_, L_VST, VST_), 'v_lshrrev_b32 v73, 16, v72', 'v_and_b32 v72, 0xffff, v72', 'v_max_u32 v72, v72, v73',
        'v_cmp_lt_u32 vcc, 0xc0db, v72', 's_cmp_lg_u64 vcc, 0', 's_cselect_b32 s66, 2, 1', 'v_mov_b32 v0, s66'])
nck = max(1, UV - UK - 1)
for q in range(nck):
    fill[min(UK + 1 + q, UV - 1)] += CKL[q * len(CKL) // nck:(q + 1) * len(CKL) // nck]
PV_ = pack_blocks(VV, PKT)
vw = stage_writes(PKT, 0)
fill[UV] += CP + ['NOP8'] + PV_[0:4] + [vw[0]] + PV_[4:8] + [vw[1]] + PV_[8:12] + [vw[2]] + PV_[12:16] + [vw[3], ('DS', 'ds_write_b32 v%d, v0 offset:16' % VFL)] + CN
fill[12] += ['v_lshlrev_b32 v%d, 4, v2' % VL16] + ['v_mov_b32 v%d, 0' % (SEL + q) for q in (0, 1, 4, 5)] + ['v_mov_b32 v%d, v%d' % (SEL + 2 + q, SEL0 + q) for q in range(2)]
WOC = E('WOC', -1)
if WOC >= 0:
    fill[WOC - 1] += ['s_and_b32 s53, s2, 0xf8', 's_lshl_b32 s53, s53, 2', 's_lshl_b32 s67, s44, 3', 's_add_u32 s53, s53, s67', 's_lshl_b32 s53, s53, 11',
                      's_lshr_b32 s67, s7, 3', 's_lshl_b32 s67, s67, 10', 's_add_u32 s53, s53, s67', 'v_lshlrev_b32 v77, 4, v2']
    WPU = E('WPU', 2)
    for q in range(8):
        fill[WOC + q // WPU] += ['buffer_load_dwordx4 v[80:83], v77, s[20:23], s53 offen offset:%d' % ((q & 1) * 2048)] + (['s_add_u32 s53, s53, 4096'] if q & 1 else [])
if E('XG', -2) == -2:
    fill[13] += x_lds(77, 78) if XL else ['buffer_load_dwordx4 %s, v%d, s[8:11], 0 offen offset:%d' % (vr(XO + 4 * q, 4), VX, 64 * q) for q in range(2)]
fill[13] += ['v_mov_b32 v76, %d' % (L_FLG + 16)]
fill[14] += [('DS', 'ds_read_b128 v[72:75], v76')]
barrier_before_reads = {2: 'b13', UB14: 'b14'}

dsq = [('R', 0, k) for k in range(16)]
for k, U in enumerate(units):
    nxt = units[k + 1] if k + 1 < len(units) else None
    R = list(nxt.reads) if nxt else []
    F = list(fill[k])
    n = len(U.mf)
    rstart = 0
    if k + 1 in barrier_before_reads:
        rstart = 2 if n <= 8 else n - 10
    ri = 0
    for i in range(n):
        if k + 1 in barrier_before_reads and i == rstart:
            stamp(1 if k == 1 else 3, 3)
            a.e('s_barrier')
            stamp(2 if k == 1 else 4, 3)
        pos = [q for q, x in enumerate(dsq) if x[0] == 'R' and x[1] == k and x[2] < U.need[i]]
        if pos:
            cnt = len(dsq) - 1 - max(pos)
            a.e('s_waitcnt lgkmcnt(%d)', min(15, cnt))
            dsq = dsq[max(pos) + 1:]
        a.e(U.mf[i])
        left = n - i
        nr = 0
        if i >= rstart:
            want = -(-(len(R) - ri) // max(1, left - 2)) if len(R) - ri > 0 else 0
            nr = min(len(R) - ri, max(want, 1 if len(R) - ri > 0 else 0), 2)
        for _ in range(nr):
            a.e(R[ri]); dsq.append(('R', k + 1, ri)); ri += 1
        nf = -(-len(F) // left)
        for _ in range(nf):
            f = F.pop(0)
            if f == 'NOP8':
                nop(6)
            elif isinstance(f, tuple):
                a.e(f[1]); dsq.append(('W', k, 0))
            else:
                a.e(f)
    assert ri == len(R) and not F, (k, ri, len(R), F)
    if k in (0, UK - 1, UK, UV - 1, UV, 14):
        stamp({0: 5, UK - 1: 6, UK: 7, UV - 1: 8, UV: 9, 14: 10}[k], 3)
stamp(4)
nop(8)
for sb in range(4):
    dst = QP + 4 * sb if sb < 2 else PKT + 4 * (sb - 2)
    for db in range(2):
        for q in range(2):
            s = QA + 8 * sb + 4 * db + 2 * q
            a.e('v_cvt_pk_bf16_f32 v%d, v%d, v%d', dst + 2 * db + q, s, s + 1)
a.e('s_lshl_b32 s66, s3, 11')
a.e('s_add_u32 s66, s66, %d', L_QH)
a.e('v_lshlrev_b32 v3, 4, v2')
a.e('v_add_u32 v3, s66, v3')
a.e('C_qw:')
a.e('s_waitcnt lgkmcnt(0)')
a.e('v_min_u32 v72, v72, v73')
a.e('v_min3_u32 v72, v72, v74, v75')
a.e('v_cmp_eq_u32 vcc, 0, v72')
a.e('s_cbranch_vccz C_qg')
a.e('ds_read_b128 v[72:75], v76')
a.e('s_branch C_qw')
a.e('C_qg:')
a.e('ds_write_b128 v3, %s', vr(PKT, 4))
a.e('ds_write_b128 v3, %s offset:1024', vr(PKT + 4, 4))
a.e('s_waitcnt lgkmcnt(0)')
a.e('s_barrier')
a.vm = []
stamp(5)
stamp(4, 6)
KB, KACC, ZB, PRF = 160, 224, 232, 236
ZH = E('ZH', 1)
ZP = 'buffer_load_dwordx4 %s, v%d, %s, 0 offen' % (vr(232, 4), VZ, WSR) + RD
if ZH == 2:
    a.e(ZP)
phi_q('P_qd')
if ZH == 1:
    a.e(ZP)
c_addr()
H1D = E('H1D', 0)
if H1D:
    a.e('s_sleep %d', H1D)
stamp(6)


def h1_issue(i, counted):
    if i < 16:
        a.e('s_xor_b32 s66, s57, %d', (i >> 2) * 4096)
        ins = 'buffer_load_dwordx4 %s, v%d, %s, s66 offen offset:%d' % (vr(KB + 4 * i, 4), VKV, WSR, (i & 3) * 1024) + (RD1 if counted else RD)
    elif i == 16:
        ins = 'buffer_load_dwordx4 %s, v%d, %s, 0 offen' % (vr(ZB, 4), VZ, WSR) + RD
    else:
        ins = 'buffer_load_dword v%d, v%d, %s, 0 offen' % (PRF, VPR, WSR) + RD
    if counted:
        a.vm_issue('kv%d' % i, ins)
    else:
        a.vm_uncounted(ins)


def h1_guarded_issue(i, tag):
    a.e('s_bitcmp1_b32 s%d, %d', sPEND, i)
    a.e('s_cbranch_scc0 %s', tag)
    h1_issue(i, False)
    a.e('%s:', tag)


def h1_max(i, first=False):
    b = KB + 4 * i if i < 16 else ZB
    if first:
        a.e('v_max_u32 v14, v%d, v%d', b, b + 1)
    else:
        a.e('v_max3_u32 v14, v14, v%d, v%d', b, b + 1)
    a.e('v_max3_u32 v14, v14, v%d, v%d', b + 2, b + 3)


def h1_acc(i):
    for q in range(2):
        a.e(mfma(KACC + 4 * q, SEL + 2 - 2 * q, KB + 4 * i, '0' if i == 0 else None))


a.e('s_lshr_b32 s66, s44, 1')
a.e('s_lshl_b32 s67, s66, 11')
a.e('s_lshl_b32 s66, s66, 6')
a.e('s_and_b32 s59, s44, 1')
a.e('s_lshl_b32 s59, s59, 3')
a.e('s_add_u32 s66, s66, s59')
a.e('s_add_u32 s67, s67, s59')
a.e('s_add_u32 s66, s66, %d', L_ZF)
a.e('s_add_u32 s67, s67, %d', L_KF)
a.e('v_add_u32 v12, s67, v%d', VL16)
a.e('v_lshrrev_b32 v13, 4, v2')
a.e('v_lshlrev_b32 v13, 4, v13')
a.e('v_add_u32 v13, s66, v13')
H1W = E('H1W', 16)
if ZH:
    a.e('s_mov_b32 s59, 0')
    a.e('P_z:')
    a.e('s_add_u32 s59, s59, 1')
    a.e('s_cmp_ge_u32 s59, %d', SPIN)
    a.e('s_waitcnt vmcnt(0)')
    a.e('s_cbranch_scc1 P_zk')
    h1_max(16, True)
    a.e('v_cmp_eq_u32 vcc, -1, v14')
    a.e('s_cbranch_vccz P_zk')
    a.e(ZP)
    a.e('s_branch P_z')
    a.e('P_zk:')
for i in range(H1W):
    h1_issue(i, True)
if E('H1E', 0):
    a.e('s_sleep %d', E('H1E', 0))
stamp(5, 6)
order = list(range(16)) + ([] if ZH else [16])


def z_out():
    for p in ['quad_perm:[1,0,3,2]', 'quad_perm:[2,3,0,1]', 'row_half_mirror', 'row_mirror']:
        for r in range(4):
            a.e('v_add_f32_dpp v%d, v%d, v%d %s row_mask:0xf bank_mask:0xf', ZB + r, ZB + r, ZB + r, p)
    a.e('v_cvt_pk_bf16_f32 v%d, v%d, v%d', ZB, ZB, ZB + 1)
    a.e('v_cvt_pk_bf16_f32 v%d, v%d, v%d', ZB + 1, ZB + 2, ZB + 3)
    a.e('ds_write_b64 v13, %s', vr(ZB, 2))


if E('R2', 0):
    assert H1W == 16
    a.e('ds_write_b32 v%d, v0 offset:48', VFL)
if ZH:
    z_out()
for k, i in enumerate(order):
    if k + H1W < len(order):
        h1_issue(order[k + H1W], True)
    a.vm_wait('kv%d' % i)
    if k == 0:
        stamp(6, 6)
    h1_max(i, k == 0)
    if i < 16:
        h1_acc(i)
a.e('v_cmp_eq_u32 vcc, -1, v14')
stamp(3, 6)
a.e('s_cbranch_vccnz P_slow')
a.e('P_h1ok:')
if ZH:
    nop(6)
else:
    z_out()
for q in range(4):
    a.e('v_cvt_pk_bf16_f32 v%d, v%d, v%d', KACC + q, KACC + 2 * q, KACC + 2 * q + 1)
a.e('ds_write_b64 v12, %s', vr(KACC, 2))
a.e('ds_write_b64 v12, %s offset:1024', vr(KACC + 2, 2))
a.e('s_branch POST')
a.e('P_slow:')
a.e('s_mov_b32 s59, 0')
a.e('P_retry:')
a.e('s_mov_b32 s%d, 0', sPEND)
for i in order:
    h1_max(i, True)
    a.e('v_cmp_eq_u32 vcc, -1, v14')
    a.e('s_cbranch_vccz P_rc%d', i)
    h1_issue(i, False)
    a.e('s_mov_b32 s%d, 1', sPEND)
    a.e('P_rc%d:', i)
a.e('s_add_u32 s59, s59, 1')
a.e('s_cmp_ge_u32 s59, %d', SPIN)
spin_rec(1)
a.e('s_cselect_b32 s%d, 0, s%d', sPEND, sPEND)
a.e('s_waitcnt vmcnt(0)')
a.e('s_cmp_lg_u32 s%d, 0', sPEND)
a.e('s_cbranch_scc1 P_retry')
for i in range(16):
    h1_acc(i)
nop(2)
a.e('s_branch P_h1ok')

a.e('HELP:')
XR = 16
WVR = 48
GWF = 56
GACC = 64
TT = 72
XS = 224
WG = 96
WD = 96
HUB = 80
VMW, VMD = 6, 7
a.e('v_lshlrev_b32 v%d, 4, v2', VL16)
a.e('s_lshl_b32 s56, s5, 2')
a.e('s_add_u32 s56, s56, s44')
a.e('s_lshl_b32 s53, s56, 10')
a.e('s_lshl_b32 s66, s4, 6')
a.e('s_add_u32 s53, s53, s66')
a.e('s_add_u32 s53, s53, %d', WS_Z)
a.e('s_lshl_b32 s56, s56, 4')
a.e('s_add_u32 s56, s56, s4')
a.e('s_lshl_b32 s56, s56, 10')
a.e('s_add_u32 s56, s56, %d', WS_KV)
a.e('s_lshl_b32 s55, s%d, 2', sKQ)
a.e('s_add_u32 s55, s55, s44')
a.e('s_lshl_b32 s55, s55, 6')
a.e('s_add_u32 s55, s55, s%d', sCG)
a.e('s_lshl_b32 s55, s55, 8')
a.e('s_add_u32 s55, s55, %d', WS_YP)
if not E('PHL', 0):
    emit(post_addr('h'))
a.e('v_lshrrev_b32 v10, 5, v2')
a.e('v_and_b32 v11, 31, v2')
a.e('v_lshlrev_b32 v12, 3, v10')
a.e('s_lshl_b32 s66, s%d, 6', sCG)
a.e('s_lshl_b32 s67, s44, 4')
a.e('s_add_u32 s66, s66, s67')
a.e('v_add_u32 v12, s66, v12')
a.e('v_lshlrev_b32 v12, 11, v12')
a.e('v_lshl_add_u32 v12, v11, 4, v12')
a.e('s_lshl_b32 s66, s%d, 9', sKQ)
a.e('v_add_u32 v%d, s66, v12', VMD)
a.e('s_lshr_b32 s62, s%d, 2', sCG)
a.e('s_lshl_b32 s62, s62, 15')
a.e('s_and_b32 s66, s%d, 3', sCG)
a.e('s_lshl_b32 s66, s66, 8')
a.e('s_add_u32 s62, s62, s66')
a.e('s_lshl_b32 s66, s44, 6')
a.e('s_add_u32 s62, s62, s66')
a.e('s_add_u32 s62, s62, %d', WS_HU)
a.e('s_add_u32 s63, s62, 16384')
a.e('v_lshrrev_b32 v1, 2, v2')
a.e('v_lshlrev_b32 v1, 10, v1')
a.e('v_and_b32 v13, 3, v2')
a.e('v_lshl_add_u32 v1, v13, 4, v1')
PB = E('PB', 2)
PS = E('PS', 4)
a.e('s_cmp_ge_u32 s44, 2')
a.e('s_cbranch_scc1 WORK')

T13, T14 = E('T13', 0), E('T14', 2)


def w1_loads():
    if E('WSL', 0):
        a.e('v_lshrrev_b32 v10, 3, v2')
        a.e('v_lshlrev_b32 v10, 11, v10')
        a.e('v_and_b32 v11, 7, v2')
        a.e('v_lshl_add_u32 v10, v11, 4, v10')
        a.e('s_and_b32 s66, s2, 0xf8')
        a.e('s_lshl_b32 s66, s66, 2')
        a.e('s_lshl_b32 s67, s44, 3')
        a.e('s_add_u32 s66, s66, s67')
        a.e('s_lshl_b32 s66, s66, 11')
        a.e('s_and_b32 s67, s7, 8')
        a.e('s_lshl_b32 s67, s67, 7')
        a.e('s_add_u32 s66, s66, s67')
        a.vm_issue('w1', 'buffer_load_dwordx4 v[240:243], v10, %s, s66 offen offset:384', sr(S_WO, 4))
    if E('WDF', 0) and E('WDS', 13) == 13:
        wd_loads()
    for k in range(T13):
        wo_pair(allrounds[k])
    if not E('WDF', 0) and E('WDS', 13) == 13:
        wd_loads()


def wo_pf(q0, q1):
    a.e('s_and_b32 s66, s2, 0xf8')
    a.e('s_lshl_b32 s66, s66, 2')
    a.e('s_lshl_b32 s67, s48, 4')
    a.e('s_add_u32 s66, s66, s67')
    a.e('s_add_u32 s66, s66, %d', q0)
    a.e('s_lshl_b32 s66, s66, 11')
    a.e('s_lshr_b32 s67, s7, 3')
    a.e('s_lshl_b32 s67, s67, 10')
    a.e('s_add_u32 s66, s66, s67')
    for q in range(q1 - q0):
        a.vm_issue('wopf', 'buffer_load_dwordx4 v[240:243], v%d, %s, s66 offen offset:%d', VL16, sr(S_WO, 4), (q & 1) * 2048)
        if q & 1:
            a.e('s_add_u32 s66, s66, 4096')


def wd_loads():
    for n in range(8):
        a.e('s_mov_b32 s66, %d', n * 2048)
        a.vm_issue('wd', 'buffer_load_dwordx4 %s, v%d, %s, s66 offen', vr(WD + 4 * n, 4), VMD, sr(S_WD, 4))


NW1 = E('WSL', 0) + 2 * T13 + (8 if E('WDS', 13) == 13 else 0)
WDS = E('WDS', 13)
a.vm = list(vm_entry)


def dma(stage, parts='AQKV', dst=None):
    slot = (stage % 3) * SLOT
    tag = 'd%d' % stage
    L = []
    for ty, c in ((1, 'K'), (2, 'V'), (0, 'Q')):
        if c in parts:
            for b in range(4):
                d = slot + BQ + ty * 8192 if dst is None else dst[c]
                L.append((d + b * 2048, b * 98304 + ty * 2048, VOB, S_W))
    LA = [((slot if dst is None else dst['A']) + q * 2048, q * 32768, VOA, S_X) for q in range(8)] if 'A' in parts else []
    L = L[:4] + LA + L[4:]
    ks_regs(stage, 70, 71)
    for (d, so, v, s) in L:
        a.e('s_add_u32 m0, s72, %d', d)
        a.e('s_add_u32 s66, s%d, %d', 70 if s == S_X else 71, so)
        a.vm_issue(tag, 'buffer_load_dwordx4 v%d, %s, s66 offen lds', v, sr(s, 4))


a.vm_wait('d0')
a.e('s_barrier')
dma(2)
for i in range(13):
    a.vm_wait('d%d' % (i + 1))
    if 0 <= i - E('SB0', 0) < 10:
        stamp(1 + i - E('SB0', 0), 5)
    a.e('s_barrier')
    if 0 <= i - E('SB0', 0) < 10:
        stamp(1 + i - E('SB0', 0), 2)
    if i + 3 < 15:
        dma(i + 3)
    if i == WDS:
        wd_loads()
    D15 = {'A': S3, 'K': S3 + 16384, 'V': S3 + 24576, 'Q': BQ}
    if i == 11:
        dma(15, 'K', D15)
    if i == 12:
        dma(15, 'A', D15)
        dma(15, 'VQ', D15)
a.vm_wait('d14')
a.e('s_barrier')
w1_loads()
a.vm_wait('d15')
a.e('s_branch H_b14')

a.e('WORK:')
a.vm = list(vm_entry)
a.e('v_mov_b32 v14, 0')
a.e('v_lshlrev_b32 v8, 5, v2')
a.e('v_add_u32 v8, %d, v8', WS_KEY)
a.e('s_lshl_b32 s66, s2, 2')
a.e('s_add_u32 s66, s66, s44')
a.e('s_cmp_lg_u32 s66, 2')
a.e('s_cbranch_scc1 W_nn')
for q in range(4):
    a.e('s_movk_i32 s66, %d', q * 2048)
    a.e('buffer_load_dword v%d, v8, %s, s66 offen offset:4' % (TT + q, WSR) + RD)
a.e('s_memrealtime s[66:67]')
a.e('s_waitcnt vmcnt(0) lgkmcnt(0)')
a.e('s_or_b32 s66, s66, 1')
a.e('W_nl:')
a.e('s_add_u32 s66, s66, 2')
a.e('v_cmp_eq_u32 vcc, s66, v%d', TT)
for q in range(1, 4):
    a.e('v_cmp_eq_u32 s[68:69], s66, v%d', TT + q)
    a.e('s_or_b64 vcc, vcc, s[68:69]')
a.e('s_cbranch_vccnz W_nl')
a.e('v_mov_b32 v10, 0')
a.e('v_mov_b32 v11, s66')
a.e('s_mov_b64 exec, 1')
a.e('buffer_store_dword v11, v10, %s, 0 offen' % sr(S_DBG, 4) + WT)
a.e('s_mov_b64 exec, -1')
a.e('W_nn:')
a.e('s_and_b32 s48, s44, 1')
if 'slowpf' in EXP:
    a.e('s_mov_b32 s68, s12')
    a.e('s_mov_b32 s69, s13')
    a.e('s_bitcmp0_b32 s64, 1')
    a.e('s_cselect_b32 s70, 0x%x, 0', 6291456)
    a.e('s_mov_b32 s71, 0x00020000')
    a.e('v_lshrrev_b32 v10, 3, v2')
    a.e('v_lshlrev_b32 v10, 11, v10')
    a.e('v_and_b32 v11, 7, v2')
    a.e('v_lshl_add_u32 v10, v11, 4, v10')
    a.e('s_lshl_b32 s66, s65, 1')
    a.e('s_add_u32 s66, s66, s48')
    a.e('s_mul_i32 s66, s66, %d', 48 * 2048)
    a.e('s_lshr_b32 s67, s64, 2')
    a.e('s_lshl_b32 s67, s67, 10')
    a.e('s_add_u32 s66, s66, s67')
    a.e('s_add_u32 s66, s66, 384')
    for q in range(6):
        a.vm_issue('pf', 'buffer_load_dwordx4 %s, v10, s[68:71], s66 offen', vr(224 + 4 * q, 4))
        if q < 5:
            a.e('s_add_u32 s66, s66, 16384')
a.vm_wait('d0')
a.e('s_barrier')
if E('ROWL', 1):
    a.vm_wait('d1')
    a.e('s_barrier')
a.e('s_lshl_b32 s50, s4, 7')
a.e('s_lshl_b32 s66, s5, 3')
a.e('s_add_u32 s50, s50, s66')
a.e('s_lshl_b32 s66, s48, 2')
a.e('s_add_u32 s50, s50, s66')
a.e('s_lshl_b32 s66, s50, 11')
a.e('s_add_u32 s67, s66, 4096')
for q in range(8):
    a.vm_issue('rows', 'buffer_load_dwordx4 %s, v%d, %s, s%d offen offset:%d', vr(XR + 4 * q, 4), VL16, sr(S_X, 4), 66 + (q >> 2), (q & 3) * 1024)
a.e('s_lshl_b32 s66, s48, 11')
a.e('s_add_u32 m0, s66, %d', L_KF)
a.e('s_nop 0')
for q in range(2):
    a.vm_issue('rows', 'buffer_load_dwordx4 v%d, %s, 0 offen offset:%d lds', VL16, sr(S_WV, 4), q * 1024)
a.e('s_lshl_b32 s66, s%d, 2', sCG)
a.e('s_add_u32 s66, s66, s%d', sKQ)
a.e('s_and_b32 s51, s66, 15')
a.e('s_lshr_b32 s67, s66, 4')
a.e('s_lshl_b32 s54, s67, 5')
a.e('s_lshl_b32 s66, s48, 4')
a.e('s_add_u32 s54, s54, s66')
a.e('s_add_u32 s54, s54, s51')
a.e('s_lshl_b32 s54, s54, 10')
a.e('s_add_u32 s54, s54, %d', WS_HU)
a.e('s_lshl_b32 s51, s51, 6')
a.e('v_lshrrev_b32 v10, 5, v2')
a.e('v_and_b32 v11, 31, v2')
a.e('v_lshlrev_b32 v12, 5, v10')
a.e('v_add_u32 v12, s51, v12')
a.e('v_mul_u32_u24 v12, 7168, v12')
a.e('v_lshl_add_u32 v12, v11, 4, v12')
a.e('s_lshl_b32 s67, s67, 9')
a.e('v_add_u32 v%d, s67, v12', VMW)
for r in range(4):
    a.e('v_mov_b32 v%d, -1', TT + r)
a.e('v_and_b32 v12, 3, v2')
a.e('v_lshlrev_b32 v12, 4, v12')
a.e('v_add_u32 v12, s53, v12')
for (lo, n, base) in ((4, 4, ('s53', -2048)), (24, 16, ('s55', 0)), (40, 16, ('s55', -32768))):
    a.e('s_add_u32 s66, %s, %d', base[0], base[1] & 0xffffffff)
    a.e('v_subrev_u32 v13, %d, v2', lo)
    a.e('v_cmp_gt_u32 vcc, %d, v13', n)
    a.e('v_lshlrev_b32 v13, 4, v13')
    a.e('v_add_u32 v13, s66, v13')
    a.e('v_cndmask_b32 v12, v12, v13, vcc')
a.e('s_sub_u32 s66, s56, 32768')
a.vm_issue('fill', 'buffer_store_dwordx4 %s, v%d, %s, s56 offen' + WT, vr(TT, 4), VL16, WSR)
a.vm_issue('fill', 'buffer_store_dwordx4 %s, v%d, %s, s66 offen' + WT, vr(TT, 4), VL16, WSR)
a.vm_issue('fill', 'buffer_store_dwordx4 %s, v%d, %s, s54 offen' + WT, vr(TT, 4), VL16, WSR)
a.vm_issue('fill', 'buffer_store_dwordx4 %s, v12, %s, 0 offen' + WT, vr(TT, 4), WSR)
loaded = []
dir_n = [0]


def moe_load(cnt, ctr):
    for _ in range(cnt):
        n = ctr[0]
        a.e('s_mov_b32 s66, %d', 0x7ffff000 if 'xmoe' in EXP else n * 7168)
        a.vm_issue('w%d' % n, 'buffer_load_dwordx4 %s, v%d, %s, s66 offen', vr(WG + 4 * n, 4), VMW, sr(S_MW, 4))
        loaded.append(n)
        ctr[0] += 1


def o_fill(q0, q1):
    for r in range(4):
        a.e('v_mov_b32 v%d, -1', 248 + r)
    a.e('s_lshl_b32 s67, s4, 3')
    a.e('s_lshl_b32 s66, s48, 2')
    a.e('s_add_u32 s67, s67, s66')
    a.e('s_lshl_b32 s67, s67, 15')
    a.e('s_lshl_b32 s66, s5, 11')
    a.e('s_add_u32 s67, s67, s66')
    for q in range(q0, q1):
        a.e('s_add_u32 s66, s67, %d', WS_O + (q >> 1) * 32768)
        a.vm_issue('ofill', 'buffer_store_dwordx4 v[248:251], v%d, %s, s66 offen offset:%d' + WT, VL16, WSR, (q & 1) * 1024)


def wk0_only(lab):
    a.e('s_cmp_lg_u32 s48, 0')
    a.e('s_cbranch_scc1 %s', lab)


def g_row(row):
    if 'xg' in EXP.split(','):
        return
    acc = TT + 4 + row
    a.e('v_mov_b32 v%d, 0', acc)
    for q in range(8):
        x = XR + 8 * row + q
        a.e('v_lshlrev_b32 v%d, 16, v%d', TT, x)
        a.e('v_and_b32 v%d, 0xffff0000, v%d', TT + 1, x)
        a.e('v_mul_f32 v%d, v%d, v%d', TT, TT, GWF + 2 * q)
        a.e('v_mul_f32 v%d, v%d, v%d', TT + 1, TT + 1, GWF + 2 * q + 1)
        a.e('v_cvt_pk_bf16_f32 v%d, 0, v%d', TT, TT)
        a.e('v_cvt_pk_bf16_f32 v%d, 0, v%d', TT + 1, TT + 1)
        a.e('v_add_f32 v%d, v%d, v%d', acc, acc, TT)
        a.e('v_add_f32 v%d, v%d, v%d', acc, acc, TT + 1)


WL = [int(x) for x in os.environ.get('WL', '0,0,0,8,0,8,0,8,0,8,0,0,0').split(',')]
GL = [int(x) for x in os.environ.get('GL', '6,6,6,4,6,4').split(',')]
WP = [int(x) for x in os.environ.get('WP', '99').split(',')]
OF = [int(x) for x in os.environ.get('OF', '2').split(',')]
assert sum(WL) == 32 and sum(GL) == 32 and PS + 3 + len(GL) == 13
GDOT = E('GDOT', 0)
mark = {}
gdone = 0
for i in range(13):
    if i == 0:
        a.vm_wait('d1')
    if i == 1:
        a.vm_wait('rows')
    if i == PB:
        a.vm_wait('fill')
    if i in (2, PS + 2):
        a.e('s_waitcnt lgkmcnt(0)')
    if 0 <= i - E('SB0', 0) < 10:
        stamp(1 + i - E('SB0', 0), 5)
    if i > 0 or not E('ROWL', 1):
        a.e('s_barrier')
    if i == 1:
        wk0_only('W_k%d' % i)
        a.vm_uncounted('buffer_load_dword v15, v14, %s, 0 offen' % sr(S_DBG, 4) + RD)
        a.e('W_k%d:', i)
        mark['tag'] = a.issued
    if i == PB:
        wk0_only('W_k%d' % i)
        a.e('v_mov_b32 v10, %d', L_FLG + 32)
        a.e('ds_read_b32 v12, v10')
        a.e('s_waitcnt vmcnt(%d)', a.issued - mark['tag'])
        a.e('s_mov_b32 s67, 0')
        a.e('W_ts:')
        a.e('v_cmp_eq_u32 vcc, 0, v15')
        a.e('s_cbranch_vccz W_tok')
        a.e('s_add_u32 s67, s67, 1')
        a.e('s_cmp_ge_u32 s67, %d', SPIN)
        spin_rec(2)
        a.e('s_cbranch_scc1 W_tok')
        a.e('s_sleep 4')
        a.e('buffer_load_dword v15, v14, %s, 0 offen' % sr(S_DBG, 4) + RD)
        a.e('s_waitcnt vmcnt(0)')
        a.e('s_branch W_ts')
        a.e('W_tok:')
        a.e('s_lshl_b32 s66, s2, 5')
        a.e('s_add_u32 s66, s66, %d', WS_KEY)
        a.e('v_mov_b32 v10, s66')
        a.e('v_mov_b32 v13, v15')
        a.e('s_waitcnt lgkmcnt(0)')
        a.e('s_mov_b64 exec, 1')
        a.vm_uncounted('buffer_store_dwordx2 v[12:13], v10, %s, 0 offen' % WSR + WT)
        a.e('s_mov_b64 exec, -1')
        a.e('W_k%d:', i)

    def collect():
        for q in range(4):
            a.e('s_movk_i32 s66, %d', q * 2048)
            a.vm_uncounted('buffer_load_dwordx2 %s, v8, %s, s66 offen' % (vr(XS + 2 * q, 2), WSR) + RD)
    if i == PS:
        wk0_only('W_k%d' % i)
        collect()
        a.e('W_k%d:', i)
        mark['keys'] = a.issued
    if i == PS + 2:
        a.e('v_mov_b32 v10, %d', L_FLG + 36)
        a.e('ds_read_b32 v11, v10')
        a.e('v_lshrrev_b32 v10, 5, v2')
        a.e('v_lshlrev_b32 v10, 6, v10')
        a.e('s_waitcnt lgkmcnt(0)')
        a.e('v_readfirstlane_b32 s66, v11')
        a.e('s_and_b32 s66, s66, 0x7ff')
        a.e('s_sub_u32 s66, 2047, s66')
        a.e('s_lshl_b32 s66, s66, 10')
        a.e('s_add_u32 s66, s66, s51')
        a.e('s_lshl_b32 s66, s66, 1')
        for q in range(4):
            a.vm_issue('xs', 'buffer_load_dwordx4 %s, v10, %s, s66 offen offset:%d', vr(XS + 4 * q, 4), sr(S_X, 4), 16 * q)
    moe_load(WL[i], dir_n)
    if i == WDS:
        assert gdone >= 8 and loaded[:8] == list(range(8))
        wd_loads()
    if i == E('WM', 99):
        a.e('s_lshl_b32 s66, s2, 1')
        a.e('s_add_u32 s66, s66, s48')
        a.e('s_lshl_b32 s66, s66, 12')
        for q in range(4):
            a.vm_issue('wopf', 'buffer_load_dwordx4 v[240:243], v%d, %s, s66 offen offset:%d', VL16, sr(S_WO, 4), q * 1024)
    if i in WP:
        k = WP.index(i)
        wo_pf(16 * k // len(WP), 16 * (k + 1) // len(WP))
    if i in OF and 'xofill' not in EXP:
        k = OF.index(i)
        o_fill(8 * k // len(OF), 8 * (k + 1) // len(OF))
    if i == 1:
        a.e('v_add_u32 v10, %d, v%d', L_KF, VL16)
        a.e('v_bfe_u32 v3, v2, 4, 1')
        a.e('v_lshrrev_b32 v11, 5, v2')
        a.e('v_lshl_add_u32 v3, v3, 1, v11')
        a.e('s_mov_b32 s67, 0xffff0000')
        a.e('s_mov_b32 s68, 0x00010001')
        a.e('s_mov_b32 s69, 0x00010001')
        for q in range(2):
            a.e('ds_read_b128 %s, v10 offset:%d', vr(WVR + 4 * q, 4), q * 1024)
        for r in range(4):
            a.e('v_mov_b32 v%d, 0', TT + r)
        a.e('s_waitcnt lgkmcnt(0)')
        for q in range(8):
            for r in range(4):
                a.e('v_dot2_f32_bf16 v%d, v%d, v%d, v%d', TT + r, XR + 8 * r + q, WVR + q, TT + r)
        nop(3)
        for q in range(2):
            a.e('ds_read_b128 %s, v10 offset:%d', vr(WVR + 4 * q, 4), 2048 + q * 1024)
        red4(TT)
        a.e('s_sub_u32 s66, %d, s50', 2047 + 0x8000)
        a.e('v_cvt_pk_bf16_f32 v%d, 0, v%d', TT, TT)
        a.e('v_sub_u32 v%d, s66, v3', TT + 1)
        a.e('v_ashrrev_i32 v%d, 31, v%d', TT + 4, TT)
        a.e('v_or_b32 v%d, 0x80000000, v%d', TT + 4, TT + 4)
        a.e('v_xor_b32 v%d, v%d, v%d', TT, TT, TT + 4)
        a.e('v_and_or_b32 v%d, v%d, s67, v%d', TT, TT, TT + 1)
        a.e('v_mov_b32 v10, %d', L_FLG + 32)
        a.e('s_mov_b64 exec, s[68:69]')
        a.e('ds_max_u32 v10, v%d', TT)
        a.e('s_mov_b64 exec, -1')
    if i == 2:
        for q in range(8):
            a.e('v_lshlrev_b32 v%d, 16, v%d', GWF + 2 * q, WVR + q)
            a.e('v_and_b32 v%d, 0xffff0000, v%d', GWF + 2 * q + 1, WVR + q)
        g_row(0)
    if i == 3:
        g_row(1); g_row(2)
    if i == 4:
        g_row(3)
    if i == PS + 1:
        wk0_only('W_c%d' % i)
        a.e('s_waitcnt vmcnt(%d)', a.issued - mark['keys'])
        a.e('s_mov_b32 s67, 0')
        a.e('W_cs:')
        a.e('v_xor_b32 v10, v%d, v15', XS + 1)
        for q in range(1, 4):
            a.e('v_xor_b32 v11, v%d, v15', XS + 2 * q + 1)
            a.e('v_or_b32 v10, v10, v11')
        a.e('v_cmp_ne_u32 vcc, 0, v10')
        a.e('s_cbranch_vccz W_cok')
        a.e('s_add_u32 s67, s67, 1')
        a.e('s_cmp_ge_u32 s67, %d', SPIN)
        spin_rec(3)
        a.e('s_cbranch_scc1 W_cok')
        a.e('s_sleep 4')
        collect()
        a.e('s_waitcnt vmcnt(0)')
        a.e('s_branch W_cs')
        a.e('W_cok:')
        a.e('v_max_u32 v12, v%d, v%d', XS, XS + 2)
        a.e('v_max3_u32 v12, v12, v%d, v%d', XS + 4, XS + 6)
        wave_reduce([12], 'v_max_u32', 68)
        a.e('v_mov_b32 v10, %d', L_FLG + 36)
        a.e('ds_write_b32 v10, v12')
        a.e('W_c%d:', i)
    if i == 4:
        G0 = TT + 4
        red4(G0)
        a.e('v_cvt_pk_bf16_f32 v%d, 0, v%d', G0, G0)
        a.e('v_mul_f32 v%d, s%d, v%d', G0, sL2E, G0)
        a.e('v_exp_f32 v%d, -v%d', G0, G0)
        a.e('s_lshl_b32 s66, s50, 4')
        a.e('v_add_f32 v%d, 1.0, v%d', G0, G0)
        a.e('v_rcp_f32 v%d, v%d', G0, G0)
        a.e('s_add_u32 s66, s66, %d', WS_G)
        a.e('v_cvt_pk_bf16_f32 v%d, 0, v%d', G0, G0)
        a.e('v_lshlrev_b32 v10, 2, v3')
        a.e('s_mov_b32 exec_lo, 0x00010001')
        a.e('s_mov_b32 exec_hi, 0x00010001')
        a.vm_issue('g', 'buffer_store_dword v%d, v10, %s, s66 offen' + WT, G0, WSR)
        a.e('s_mov_b64 exec, -1')
    if i == PS + 3:
        a.vm_wait('xs')
        for r in range(8):
            a.e('v_mov_b32 v%d, 0', GACC + r)
    if i >= PS + 3:
        for n in loaded[gdone:gdone + GL[i - PS - 3]]:
            a.vm_wait('w%d' % n)
            if 'xgemv' not in EXP:
                emit(gemv_rows(WG + 4 * n, XS, n, GACC, TT, GDOT))
        gdone += GL[i - PS - 3]
        assert gdone <= len(loaded), (i, gdone, len(loaded))


def red_half(acc, vaddr, t):
    a.e('v_and_b32 v%d, 31, v2', vaddr)
    a.e('v_lshrrev_b32 v%d, 5, v2', t)
    a.e('v_lshl_add_u32 v%d, v%d, 1, v%d', vaddr, vaddr, t)
    for q in range(4):
        a.e('v_permlane32_swap_b32 v%d, v%d', acc + q, acc + 4 + q)
    a.e('v_lshlrev_b32 v%d, 4, v%d', vaddr, vaddr)
    for q in range(4):
        a.e('v_add_f32 v%d, v%d, v%d', acc + q, acc + q, acc + 4 + q)


red_half(GACC, TT + 4, TT + 5)
a.vm_issue('hu', 'buffer_store_dwordx4 %s, v%d, %s, s54 offen' + WT, vr(GACC, 4), TT + 4, WSR)
a.e('s_barrier')
w1_loads()
a.e('H_b14:')
a.e('s_barrier')
a.vm = []
if 'noprio' not in EXP:
    a.e('s_setprio %d', E('HPRIO', 3))
a.vm = ['old'] + ['w1'] * NW1
for k in range(T13, T13 + T14):
    wo_pair(allrounds[k])
a.e('s_mov_b32 s70, 0x%x', LOG2E)
a.e('s_mov_b32 s71, 0x%x', LOG2E)
if E('PHL', 0):
    emit(post_addr('h'))
KR, VR, PKH, KVA, ZA, ONES = 16, 208, 32, 192, 200, 204
a.e('s_and_b32 s66, s44, 2')
a.e('s_lshl_b32 s67, s66, 2')
a.e('s_add_u32 s67, s67, %d', L_FLG)
a.e('v_mov_b32 v10, s67')
a.e('s_lshl_b32 s66, s66, 12')
a.e('s_and_b32 s67, s44, 1')
a.e('s_lshl_b32 s67, s67, 10')
a.e('v_add_u32 v11, s66, v%d', VL16)
a.e('v_add_u32 v12, s67, v11')
a.e('v_add_u32 v11, %d, v11', L_VST)
for r in range(4):
    a.e('v_mov_b32 v%d, 0x3f803f80', ONES + r)
a.e('H_fk:')
a.e('ds_read_b64 v[14:15], v10')
a.e('s_waitcnt lgkmcnt(0)')
a.e('v_min_u32 v14, v14, v15')
a.e('v_cmp_eq_u32 vcc, 0, v14')
a.e('s_cbranch_vccnz H_fk')
stamp(2)
for k in range(4):
    a.e('ds_read_b128 %s, v12 offset:%d', vr(KR + 4 * k, 4), L_KST + k * 2048)
P = phi_packed(KR, PKH, 16, TT)
per = len(P) // 4
VPOS = E('VPOS', 4)
for k in range(VPOS):
    a.e('s_waitcnt lgkmcnt(%d)', 3 - k)
    emit(P[k * per:(k + 1) * per])
TP_ = E('TP', 0)
for k in range(T13 + T14, T13 + T14 + TP_):
    wo_pair(allrounds[k])
stamp(4)
a.e('H_fv:')
a.e('ds_read_b64 v[14:15], v10 offset:16')
a.e('s_waitcnt lgkmcnt(0)')
a.e('v_min_u32 v13, v14, v15')
a.e('v_cmp_eq_u32 vcc, 0, v13')
a.e('s_cbranch_vccnz H_fv')
for k in range(4):
    for eb in range(2):
        a.e('ds_read_b128 %s, v11 offset:%d', vr(VR + 8 * k + 4 * eb, 4), k * 2048 + eb * 1024)
a.e('v_max_u32 v13, v14, v15')
a.e('v_cmp_eq_u32 vcc, 2, v13')
a.e('s_cbranch_vccnz H_eps')


def kv_mf(k):
    L = [mfma(ZA, PKH + 4 * k, ONES, '0' if k == 0 else None)]
    for eb in range(2):
        L += ['s_waitcnt lgkmcnt(%d)' % (7 - 2 * k - eb), mfma(KVA + 4 * eb, PKH + 4 * k, VR + 8 * k + 4 * eb, '0' if k == 0 else None)]
    return L


rest = P[VPOS * per:]
M_ = [x for k in range(VPOS) for x in kv_mf(k)]
if rest:
    h_ = len(rest) // 3
    emit(rest[:h_])
    rest = rest[h_:]
    step = max(1, len(rest) // len(M_))
    while rest or M_:
        if M_:
            a.e(M_.pop(0))
        emit(rest[:step]); rest = rest[step:]
    nop(2)
else:
    emit(M_)
for k in range(VPOS, 4):
    emit(kv_mf(k))
a.e('H_ne:')
a.e('v_lshrrev_b32 v13, 4, v2')
a.e('v_lshlrev_b32 v13, 4, v13')
a.e('v_and_b32 v14, 15, v2')
a.e('v_cmp_eq_u32 s[68:69], 0, v14')
a.e('s_lshl_b32 s66, s44, 11')
a.e('s_add_u32 s66, s66, %d', L_QH)
a.e('v_add_u32 v3, s66, v%d', VL16)
a.vm_wait('old')
nop(2)
for q in range(4):
    a.e('v_cvt_pk_bf16_f32 v%d, v%d, v%d', TT + q, KVA + 2 * q, KVA + 2 * q + 1)
a.vm_issue('kvs', 'buffer_store_dwordx4 %s, v%d, %s, s56 offen' + WT, vr(TT, 4), VL16, WSR)
a.e('s_mov_b64 exec, s[68:69]')
a.vm_issue('kvs', 'buffer_store_dwordx4 %s, v13, %s, s53 offen' + WT, vr(ZA, 4), WSR)
a.e('s_mov_b64 exec, -1')
stamp(3)
if STAMPS == 8:
    stamp(3, 8)
    a.e('s_waitcnt vmcnt(0)')
    stamp(4, 8)
T15 = E('T15', 2)
assert T13 + T14 + TP_ + T15 <= 6
for k in range(T13 + T14 + TP_, T13 + T14 + TP_ + T15):
    wo_pair(allrounds[k])
if E('XG', -2) == -2:
    x_loads()
a.e('s_setprio 0')
a.e('s_barrier')
a.e('ds_read_b128 %s, v3', vr(QP, 4))
a.e('ds_read_b128 %s, v3 offset:1024', vr(QP + 4, 4))
stamp(5)
stamp(4, 6)
def gemv2(younger):
    a.e('s_waitcnt vmcnt(%d)', younger)
    a.e('s_mov_b32 s59, 0')
    a.e('Q_hchk:')
    a.e('v_max3_u32 v5, v%d, v%d, v%d', HUB, HUB + 1, HUB + 2)
    a.e('v_max3_u32 v5, v5, v%d, v%d', HUB + 3, HUB + 4)
    a.e('v_max3_u32 v5, v5, v%d, v%d', HUB + 5, HUB + 6)
    a.e('v_max_u32 v5, v5, v%d', HUB + 7)
    a.e('v_cmp_eq_u32 vcc, -1, v5')
    a.e('s_cbranch_vccz Q_hok')
    a.e('s_add_u32 s59, s59, 1')
    a.e('s_cmp_ge_u32 s59, %d', SPIN)
    spin_rec(5)
    a.e('s_cbranch_scc1 Q_hok')
    a.e('s_sleep 4')
    for q in range(2):
        a.e('buffer_load_dwordx4 %s, v1, %s, s%d offen' % (vr(HUB + 4 * q, 4), WSR, 62 + q) + RD)
    a.e('s_waitcnt vmcnt(0)')
    a.e('s_branch Q_hchk')
    a.e('Q_hok:')
    for m in range(2):
        for q in range(2):
            a.e('v_permlane16_swap_b32 v%d, v%d', HUB + 4 * m + q, HUB + 4 * m + 2 + q)
    for m in range(2):
        for q in range(2):
            a.e('v_add_f32 v%d, v%d, v%d', HUB + 4 * m + q, HUB + 4 * m + q, HUB + 4 * m + 2 + q)
    a.e('v_and_b32 v5, 3, v2')
    a.e('v_lshlrev_b32 v5, 3, v5')
    for m in range(2):
        a.e('v_permlane32_swap_b32 v%d, v%d', HUB + 4 * m, HUB + 4 * m + 1)
    a.e('v_bfe_u32 v6, v2, 4, 1')
    a.e('v_lshl_add_u32 v5, v6, 2, v5')
    G_, U_, T_ = HUB, HUB + 4, HUB + 1
    a.e('v_add_f32 v%d, v%d, v%d', G_, HUB, HUB + 1)
    a.e('v_add_f32 v%d, v%d, v%d', U_, HUB + 4, HUB + 5)
    a.e('v_lshrrev_b32 v6, 5, v2')
    a.e('v_lshl_add_u32 v5, v6, 1, v5')
    for p in ('row_ror:4', 'row_ror:8'):
        for r in (G_, U_):
            a.e('v_add_f32_dpp v%d, v%d, v%d %s row_mask:0xf bank_mask:0xf', r, r, r, p)
        nop(1)
    a.e('s_lshl_b32 s66, s44, 5')
    a.e('s_add_u32 s66, s66, %d', L_HS)
    a.e('v_cvt_pk_bf16_f32 v%d, 0, v%d', G_, G_)
    a.e('v_cvt_pk_bf16_f32 v%d, 0, v%d', U_, U_)
    a.e('v_mul_f32 v%d, s%d, v%d', T_, sL2E, G_)
    a.e('v_exp_f32 v%d, -v%d', T_, T_)
    a.e('v_add_u32 v5, s66, v5')
    a.e('v_add_f32 v%d, 1.0, v%d', T_, T_)
    a.e('v_rcp_f32 v%d, v%d', T_, T_)
    a.e('v_lshlrev_b32 v6, 4, v6')
    a.e('v_mul_f32 v%d, v%d, v%d', T_, T_, G_)
    a.e('v_cvt_pk_bf16_f32 v%d, 0, v%d', T_, T_)
    a.e('v_add_u32 v6, s66, v6')
    a.e('v_mul_f32 v%d, v%d, v%d', T_, T_, U_)
    a.e('v_cvt_pk_bf16_f32 v%d, v%d, v%d', T_, T_, T_)
    a.e('ds_write_b16 v5, v%d', T_)
    a.e('ds_read_b128 %s, v6', vr(HUB + 4, 4))
    for r in range(8):
        a.e('v_mov_b32 v%d, 0', GACC + r)
    a.e('s_waitcnt lgkmcnt(0)')
    for n in range(8):
        emit(gemv_rows(WD + 4 * n, HUB + 4, n, GACC, TT, True))
    red_half(GACC, TT + 4, TT + 5)
    a.e('s_add_u32 s66, s72, %d', L_Y4)
    a.e('v_add_u32 v%d, s66, v%d', TT + 4, TT + 4)
    a.e('ds_write_b128 v%d, %s', TT + 4, vr(GACC, 4))


G2E = E('G2E', 1)


def hu_loads():
    for q in range(2):
        a.vm_issue('hul', 'buffer_load_dwordx4 %s, v1, %s, s%d offen' + RD, vr(HUB + 4 * q, 4), WSR, 62 + q)


if G2E:
    hu_loads()
for k in range(T13 + T14 + TP_ + T15, R1):
    wo_pair(allrounds[k])
stamp(5, 6)
a.e('s_waitcnt lgkmcnt(0)')
phi_q('P_qh')
c_addr()
stamp(6, 6)
stamp(6)
if not G2E:
    hu_loads()
else:
    gemv2(2 * (R1 - T13 - T14 - TP_ - T15))
R2 = E('R2', 0)
if R2:
    a.e('v_mov_b32 v5, %d', L_FLG + 48)
    a.e('H_fi:')
    a.e('ds_read_b128 v[12:15], v5')
    a.e('s_waitcnt lgkmcnt(0)')
    a.e('v_min_u32 v12, v12, v13')
    a.e('v_min3_u32 v12, v12, v14, v15')
    a.e('v_cmp_eq_u32 vcc, 0, v12')
    a.e('s_cbranch_vccz H_fg')
    a.e('s_sleep 1')
    a.e('s_branch H_fi')
    a.e('H_fg:')
    for k in range(R1, R1 + R2):
        wo_pair(allrounds[k])
stamp(3, 6)
a.e('s_lshl_b32 s66, s6, 6')
a.e('s_add_u32 s66, s66, %d', WS_Z)
a.e('v_lshlrev_b32 v%d, 10, v2', VPR)
a.e('v_add_u32 v%d, s66, v%d', VPR, VPR)
a.e('s_cmp_lg_u32 s44, 0')
a.e('s_cbranch_scc1 H_pd')
a.e('s_mov_b32 s59, 0')
a.e('H_pl:')
a.e('buffer_load_dword v14, v%d, %s, 0 offen' % (VPR, WSR) + RD)
a.e('s_waitcnt vmcnt(0)')
a.e('v_cmp_eq_u32 vcc, -1, v14')
a.e('s_cbranch_vccz H_pd')
a.e('s_add_u32 s59, s59, 1')
a.e('s_cmp_ge_u32 s59, %d', SPIN)
spin_rec(4)
a.e('s_cbranch_scc1 H_pd')
a.e('s_sleep 2')
a.e('s_branch H_pl')
a.e('H_pd:')

a.e('POST:')
a.vm = ['wo']
a.e('s_waitcnt lgkmcnt(0)')
stamp(1, 6)
a.e('s_barrier')
stamp(2, 6)
stamp(7)
a.e('s_mov_b32 s66, %d', WS_G)
a.vm_issue('g', 'buffer_load_dword v%d, v%d, %s, s66 offen' + RD, GR, VG, WSR)
a.e('ds_read_b128 %s, v11', vr(ZF, 4))
a.e('ds_read_b128 %s, v10', vr(KF, 4))
a.e('ds_read_b128 %s, v10 offset:1024', vr(KF + 4, 4))
a.e('v_mov_b32 v3, %d', L_FLG + 36)
a.e('ds_read_b32 v4, v3')
a.e('s_waitcnt lgkmcnt(3)')
for sb in range(2):
    a.e(mfma(DEN + 4 * sb, ZF, PQ + 4 * sb, '0'))
a.e('s_waitcnt lgkmcnt(1)')
for sb in range(2):
    for eb in range(2):
        a.e(mfma(NA + 8 * sb + 4 * eb, KF + 4 * eb, PQ + 4 * sb, '0'))
nop(4)
for sb in range(2):
    a.e('v_cvt_pk_bf16_f32 v%d, 0, v%d', DEN + 4 * sb, DEN + 4 * sb)
for sb in range(2):
    a.e('v_add_f32 v%d, s%d, v%d', DEN + 4 * sb, sEPS, DEN + 4 * sb)
for sb in range(2):
    a.e('v_cvt_pk_bf16_f32 v%d, 0, v%d', DEN + 4 * sb, DEN + 4 * sb)
for sb in range(2):
    a.e('v_rcp_f32 v%d, v%d', DEN + 4 * sb, DEN + 4 * sb)
for sb in range(2):
    N = NA + 8 * sb
    for r in range(8):
        a.e('v_cvt_pk_bf16_f32 v%d, 0, v%d', N + r, N + r)
    for q in range(4):
        a.e('v_pk_mul_f32 %s, %s, %s op_sel_hi:[1,0]', vr(N + 2 * q, 2), vr(N + 2 * q, 2), vr(DEN + 4 * sb, 2))
    for q in range(4):
        a.e('v_cvt_pk_bf16_f32 v%d, v%d, v%d', KF + 4 * sb + q, N + 2 * q, N + 2 * q + 1)
    a.vm_issue('os', 'buffer_store_dwordx4 %s, v%d, %s, s%d offen' + WT, vr(KF + 4 * sb, 4), VL16, WSR, 60 + sb)
stamp(8)
if STAMPS == 8:
    stamp(1, 8)
    a.e('s_waitcnt vmcnt(0)')
    stamp(2, 8)
a.e('s_waitcnt lgkmcnt(0)')
a.e('v_readfirstlane_b32 s%d, v4', sKEY)

VO0, VO1, VW = 3, 4, 160
stamp(6, 4)
a.e('s_waitcnt vmcnt(%d)', (3 if G2E else 5) + 2 * R2)
a.vm = []
a.e('s_barrier')
a.e('s_lshl_b32 s53, s45, 12')
a.e('s_add_u32 s53, s53, s72')
a.e('s_lshl_b32 s54, s45, 16')


def wo_round(r):
    kh, m = r
    a.e('s_add_u32 s67, s%d, %d', sM0, m * 262144)
    a.e('s_and_b32 s67, s67, 0x1fffff')
    a.e('s_add_u32 m0, s53, %d', wo_lds(kh, m))
    a.e('s_add_u32 s67, s67, s54')
    a.e('s_add_u32 s67, s67, %d', kh * 131072)
    a.vm_issue('wo', 'buffer_load_dwordx4 v%d, %s, s67 offen lds', VWO, sr(S_WO, 4))


if G2E:
    for r in allrounds[R1 + R2:]:
        wo_round(r)
    R1 = 16
a.e('s_cmp_eq_u32 s45, 0')
a.e('s_cbranch_scc0 Q_hg')
sv = list(a.vm); si = a.issued
NPL = E('NPL', 0)
for r in allrounds[R1 + R2:16 - NPL]:
    wo_pair(r)
a.vm = sv; a.issued = si
a.e('s_branch Q_hd')
a.e('Q_hg:')
if not G2E:
    gemv2(3 + 2 * R2)
a.e('s_waitcnt lgkmcnt(0)')
a.e('Q_hd:')
if E('XG', -2) == -1:
    x_loads()
stamp(7, 4)
a.e('s_and_b32 s%d, s%d, 0x7ff', sIDX, sKEY)
a.e('s_sub_u32 s%d, 2047, s%d', sIDX, sIDX)
a.e('s_lshl_b32 s66, s6, 3')
a.e('s_lshl_b32 s67, s44, 1')
a.e('s_add_u32 s66, s66, s67')
a.e('s_lshl_b32 s66, s66, 15')
a.e('s_lshl_b32 s67, s45, 11')
a.e('s_add_u32 s66, s66, s67')
a.e('s_lshl_b32 s67, s45, 15')
a.e('s_add_u32 s66, s66, s67')
a.e('v_add_u32 v%d, s66, v%d', VO1, VL16)
a.e('v_xor_b32 v%d, 0x8000, v%d', VO0, VO1)
a.e('s_lshr_b32 s63, s%d, 6', sM0)


def o_list(g, counted=True, sreg=66):
    b = OB + 16 * (g % 3)
    return ['buffer_load_dwordx4 %s, v%d, %s, s%d offen offset:%d' % (vr(b + 8 * hh + 4 * sb, 4), VO0 + sb, WSR, sreg, hh * 1024) + (RD1 if counted else RD)
            for hh in range(2) for sb in range(2)]


def o_loads(g, counted=True, sreg=66):
    for ins in o_list(g, counted, sreg):
        if counted:
            a.vm_issue('o%d' % g, ins)
        else:
            a.vm_uncounted(ins)


def o_soff(g, dst):
    a.e('s_add_u32 s%d, s63, %d', dst, g * 4096)
    a.e('s_and_b32 s%d, s%d, 0x7fff', dst, dst)


def o_check(g):
    b = OB + 16 * (g % 3)
    return (['v_max3_u32 v5, v%d, v%d, v%d' % (b, b + 1, b + 2)] + ['v_max3_u32 v5, v5, v%d, v%d' % (b + q, b + q + 1) for q in range(3, 15, 2)] +
            ['v_max_u32 v5, v5, v%d' % (b + 15), 'v_cmp_eq_u32 vcc, -1, v5'])


a.e('v_lshrrev_b32 v5, 4, v2')
a.e('v_bfe_u32 v6, v2, 2, 2')
a.e('v_lshl_add_u32 v8, v5, 2, v6')
a.e('v_bfe_u32 v6, v8, 1, 2')
a.e('v_lshlrev_b32 v8, 7, v8')
a.e('v_and_b32 v5, 3, v2')
a.e('v_lshl_add_u32 v8, v5, 3, v8')
for st in range(4):
    a.e('s_mul_i32 s%d, s45, %d', 66 + st, WSET[st][1])
    a.e('s_add_u32 s%d, s%d, %d', 66 + st, 66 + st, WSET[st][0])
for cb in range(4):
    a.e('v_xor_b32 v5, %d, v6', cb)
    a.e('v_lshl_add_u32 v5, v5, 5, v8')
    for st in range(4):
        a.e('v_add_u32 v%d, s%d, v5', VW + 4 * st + cb, 66 + st)
a.e('s_lshr_b32 s66, s%d, 7', sIDX)
a.e('s_cmp_eq_u32 s66, s6')
a.e('s_cselect_b32 s51, 1, 0')
a.e('s_barrier')
H2D = E('H2D', 0)
if H2D:
    a.e('s_sleep %d', H2D)
stamp(9)
stamp(8, 4)
stamp(1, 7)
if STAMPS == 7:
    a.e('s_mov_b32 s100, 0')
if E('P2PRIO', 0):
    a.e('s_cmp_eq_u32 s45, 0')
    a.e('s_cbranch_scc1 Q_np')
    a.e('s_setprio 1')
    a.e('Q_np:')
o_soff(0, 66)
o_loads(0)
a.e('s_cmp_eq_u32 s45, 0')
a.e('s_cbranch_scc1 Q_ny4')
a.e('s_lshl_b32 s66, s44, 8')
a.e('s_add_u32 s66, s66, %d', L_Y4)
a.e('v_lshlrev_b32 v5, 2, v2')
a.e('v_add_u32 v6, s66, v5')
for q in range(4):
    a.e('ds_read_b32 v%d, v6 offset:%d', GACC + q, q * 1024)
a.e('s_waitcnt lgkmcnt(0)')
a.e('v_add_f32 v%d, v%d, v%d', GACC, GACC, GACC + 1)
a.e('v_add_f32 v%d, v%d, v%d', GACC + 2, GACC + 2, GACC + 3)
a.e('v_add_f32 v%d, v%d, v%d', GACC, GACC, GACC + 2)
a.vm_uncounted('buffer_store_dword v%d, v5, %s, s55 offen' % (GACC, WSR) + WT)
a.e('Q_ny4:')
T2L = ['v_sub_f32 v%d, 1.0, v%d' % (OM, GR), 'v_cvt_pk_bf16_f32 v%d, 0, v%d' % (OM, OM)]
for q in range(8):
    T2L += ['v_lshlrev_b32 v%d, 16, v%d' % (T2 + 2 * q, XO + q), 'v_and_b32 v%d, 0xffff0000, v%d' % (T2 + 2 * q + 1, XO + q),
            'v_mul_f32 v%d, v%d, v%d' % (T2 + 2 * q, T2 + 2 * q, OM), 'v_mul_f32 v%d, v%d, v%d' % (T2 + 2 * q + 1, T2 + 2 * q + 1, OM),
            'v_cvt_pk_bf16_f32 v%d, 0, v%d' % (T2 + 2 * q, T2 + 2 * q), 'v_cvt_pk_bf16_f32 v%d, 0, v%d' % (T2 + 2 * q + 1, T2 + 2 * q + 1)]
T2L += ['v_mov_b32 v%d, v%d' % (GR + 2, GR), 'v_mov_b32 v%d, v%d' % (GR + 3, GR),
        's_lshl_b32 s66, s3, 12', 's_add_u32 s67, s66, 24576', 'v_add_u32 v6, s67, v%d' % VL16,
        's_xor_b32 s66, s66, 16384', 's_add_u32 s66, s66, 24576', 'v_add_u32 v7, s66, v%d' % VL16]
o_soff(1, 66)
o_loads(1)


def wo_reads(hd):
    return ['ds_read_b64_tr_b16 %s, v%d offset:%d' % (vr(WOF + 16 * (hd & 1) + 4 * cb + 2 * tt, 2), VW + 4 * WGRP[hd >> 1][0] + cb, WGRP[hd >> 1][1] + (hd & 1) * 4096 + tt * 2048)
            for cb in range(4) for tt in range(2)]


if R1 < 2:
    a.vm_wait('o0')
    a.e('s_barrier')
emit(wo_reads(0))
stamp(9, 4)
a.vm_wait('o0')
stamp(10, 4)
emit(o_check(0))
a.e('s_cbranch_vccnz Q_rt0')
def y_sum():
    a.e('s_cmp_eq_u32 s51, 0')
    a.e('s_cbranch_scc1 Q_ny1')
    a.e('s_mov_b32 s59, 0')
    a.e('Q_ychk:')
    a.e('s_waitcnt vmcnt(0)')
    a.e('v_max3_u32 v5, v%d, v%d, v%d', YL, YL + 1, YL + 2)
    a.e('v_max3_u32 v5, v5, v%d, v%d', YL + 3, YL + 4)
    a.e('v_max3_u32 v5, v5, v%d, v%d', YL + 5, YL + 6)
    a.e('v_max_u32 v5, v5, v%d', YL + 7)
    a.e('v_cmp_eq_u32 vcc, -1, v5')
    a.e('s_cbranch_vccz Q_yok')
    a.e('s_add_u32 s59, s59, 1')
    a.e('s_cmp_ge_u32 s59, %d', SPIN)
    spin_rec(6)
    a.e('s_cbranch_scc1 Q_yok')
    a.e('s_sleep 4')
    for q in range(2):
        a.e('buffer_load_dwordx4 %s, v%d, %s, s64 offen offset:%d' % (vr(YL + 4 * q, 4), VL16, WSR, q * 1024) + RD)
    a.e('s_branch Q_ychk')
    a.e('Q_yok:')
    for q in range(4):
        a.e('v_add_f32 v%d, v%d, v%d', YL + q, YL + q, YL + 4 + q)
    nop(2)
    for q in range(2):
        a.e('v_permlane16_swap_b32 v%d, v%d', YL + q, YL + 2 + q)
    for q in range(2):
        a.e('v_add_f32 v%d, v%d, v%d', YL + q, YL + q, YL + 2 + q)
    a.e('v_and_b32 v5, 15, v2')
    a.e('v_lshlrev_b32 v5, 4, v5')
    a.e('v_permlane32_swap_b32 v%d, v%d', YL, YL + 1)
    a.e('v_bfe_u32 v8, v2, 4, 1')
    a.e('v_lshl_add_u32 v5, v8, 3, v5')
    a.e('v_lshrrev_b32 v8, 5, v2')
    a.e('v_lshl_add_u32 v5, v8, 2, v5')
    a.e('v_add_f32 v%d, v%d, v%d', YL, YL, YL + 1)
    a.e('s_lshl_b32 s66, s3, 8')
    a.e('s_add_u32 s66, s66, %d', L_YS)
    a.e('v_add_u32 v5, s66, v5')
    a.e('ds_write_b32 v5, v%d', YL)
    a.e('v_mov_b32 v5, %d', L_FLG + 40)
    a.e('v_mov_b32 v8, 1')
    a.e('s_mov_b64 exec, 1')
    a.e('ds_add_u32 v5, v8')
    a.e('s_mov_b64 exec, -1')
    a.e('s_waitcnt lgkmcnt(0)')
    a.e('Q_ny1:')


def y_upd():
    a.e('s_cmp_eq_u32 s51, 0')
    a.e('s_cbranch_scc1 Q_ny2')
    a.e('s_cmp_lg_u32 s3, 0')
    a.e('s_cbranch_scc1 Q_ny2')
    a.e('v_mov_b32 v5, %d', L_FLG + 40)
    a.e('Q_yw:')
    a.e('ds_read_b32 v8, v5')
    a.e('s_waitcnt lgkmcnt(0)')
    a.e('v_cmp_ne_u32 vcc, 8, v8')
    a.e('s_cbranch_vccnz Q_yw')
    a.e('v_lshlrev_b32 v8, 2, v2')
    a.e('v_add_u32 v8, %d, v8', L_YS)
    for w in range(8):
        a.e('ds_read_b32 v%d, v8 offset:%d', YL + w, w * 256)
    a.e('s_and_b32 s66, s%d, 0xffff0000', sKEY)
    a.e('s_xor_b32 s67, s66, 0x80000000')
    a.e('s_not_b32 s68, s66')
    a.e('s_and_b32 s68, s68, 0xffff0000')
    a.e('s_cmp_ge_u32 s66, 0x80000000')
    a.e('s_cselect_b32 s66, s67, s68')
    a.e('v_mov_b32 v40, s66')
    a.e('v_mul_f32 v40, s%d, v40', sL2E)
    a.e('v_exp_f32 v40, -v40')
    nop(1)
    a.e('v_add_f32 v40, 1.0, v40')
    a.e('v_rcp_f32 v40, v40')
    nop(1)
    a.e('v_cvt_pk_bf16_f32 v40, 0, v40')
    a.e('s_waitcnt lgkmcnt(0)')
    for w in range(1, 8):
        a.e('v_add_f32 v%d, v%d, v%d', YL, YL, YL + w)
    a.e('v_cvt_pk_bf16_f32 v%d, 0, v%d', YL, YL)
    a.e('v_mul_f32 v%d, v%d, v40', YL, YL)
    a.e('v_cvt_pk_bf16_f32 v%d, 0, v%d', YL, YL)
    a.e('ds_write_b32 v8, v%d offset:2048', YL)
    a.e('s_waitcnt lgkmcnt(0)')
    a.e('Q_ny2:')


GB2 = 8 - NPL // 2
YG = E('YG', 4)
XG = E('XG', -2)
lr = allrounds[16 - NPL:]
GBW = 2
for g in range(8):
    b = OB + 16 * (g % 3)
    if g == 0 and E('AL2', 0):
        a.e('.p2align %d', E('AL2', 0))
        for _ in range(E('AL2N', 0)):
            a.e('s_nop 0')
    a.e('Q_go%d:', g)
    stamp(2 + g, 7)
    if g == 0:
        stamp(1)
    if g == YG:
        a.e('s_cmp_eq_u32 s51, 0')
        a.e('s_cbranch_scc1 Q_ny0')
        a.e('s_lshl_b32 s64, s7, 14')
        a.e('s_lshl_b32 s66, s3, 11')
        a.e('s_add_u32 s64, s64, s66')
        a.e('s_add_u32 s64, s64, %d', WS_YP)
        for q in range(2):
            a.vm_uncounted('buffer_load_dwordx4 %s, v%d, %s, s64 offen offset:%d' % (vr(YL + 4 * q, 4), VL16, WSR, q * 1024) + RD)
        a.e('Q_ny0:')
    if g == E('PG', 5):
        a.e('s_cmp_eq_u32 s45, 0')
        a.e('s_cbranch_scc1 Q_np2')
        a.e('s_setprio 1')
        a.e('Q_np2:')
    if g == YG + 1:
        y_sum()
    for hh in range(2):
        hd = 2 * g + hh
        R = wo_reads(hd + 1) if hd + 1 < 16 else []
        LD = o_list(g + 2) if hh == 0 and g + 2 < 8 else []
        CK = o_check(g + 1) if hh == 1 and g + 1 < 8 else []
        if LD:
            o_soff(g + 2, 66)
        if hh == 1 and g + 1 == GBW:
            a.e('s_waitcnt lgkmcnt(0)')
            a.e('s_barrier')
        FL = []
        if hd in (12, 14, 15):
            n_ = {12: 24, 14: 99, 15: 99}[hd]
            FL, T2L = T2L[:n_], T2L[n_:]
            if hd == 12:
                a.vm_wait('xo')
        late = hh == 1 and g + 1 == GB2
        if hd == 15:
            emit(FL)
            for cb in range(4):
                a.e('s_waitcnt lgkmcnt(%d)', 6 - 2 * cb)
                a.e(mfma(AC2 + 4 * cb, WOF + 16 + 4 * cb, b + 8))
            for cb in range(4):
                a.e(mfma(AC2 + 16 + 4 * cb, WOF + 16 + 4 * cb, b + 12))
                nop(1)
            for cb in range(4):
                a.e('ds_write_b128 v6, %s offset:%d', vr(AC2 + 4 * cb, 4), cb * 1024)
            continue
        k = 0
        for cb in range(4):
            a.e('s_waitcnt lgkmcnt(%d)', 6 - 2 * cb + k)
            for sb in range(2):
                i = 2 * cb + sb
                a.e(mfma(AC2 + 16 * sb + 4 * cb, WOF + 16 * hh + 4 * cb, b + 8 * hh + 4 * sb, '0' if hd == 0 else None))
                if CK and i == 2:
                    a.vm_wait('o%d' % (g + 1))
                    if late:
                        a.e('s_barrier')
                if i > (1 if late else 0) and k < len(R):
                    for _ in range((2 if i >= 6 else 1) if late else (2 if i == 7 else 1)):
                        a.e(R[k]); k += 1
                if LD and i % 2 == 0:
                    a.vm_issue('o%d' % (g + 2), LD.pop(0))
                if hh == 0 and g == XG and i == 7:
                    x_loads()
                if hh == 1 and lr and i in (0, 4) and g + 3 <= GB2:
                    kh, m = lr.pop(0)
                    a.e('s_add_u32 s67, s%d, %d', sM0, m * 262144)
                    a.e('s_and_b32 s67, s67, 0x1fffff')
                    a.e('s_add_u32 m0, s53, %d', wo_lds(kh, m))
                    a.e('s_add_u32 s67, s67, s54')
                    a.e('s_add_u32 s67, s67, %d', kh * 131072)
                    a.vm_issue('wo', 'buffer_load_dwordx4 v%d, %s, s67 offen lds', VWO, sr(S_WO, 4))
                for _ in range(-(-len(FL) // (8 - i))):
                    a.e(FL.pop(0))
                if CK and i >= 2:
                    for _ in range(2 if i >= 5 else 1):
                        a.e(CK.pop(0))
        assert k == len(R) and not LD and not CK
    if g + 1 < 8:
        a.e('s_cbranch_vccnz Q_rt%d', g + 1)
assert not lr and not T2L
stamp(10)
stamp(1, 4)
y_upd()
stamp(2, 4)
a.e('s_waitcnt lgkmcnt(0)')
stamp(3, 4)
a.e('s_barrier')
stamp(4, 4)
for q in range(4):
    a.e('ds_read_b128 %s, v7 offset:%d', vr(AC2 + 4 * q, 4), q * 1024)
a.e('v_cmp_eq_u32 vcc, s%d, v%d', sIDX, VROW)
a.e('s_and_saveexec_b64 s[68:69], vcc')
a.e('s_cbranch_execz Q_nr')
a.e('v_bfe_u32 v8, v2, 4, 1')
a.e('v_lshlrev_b32 v8, 6, v8')
a.e('v_lshrrev_b32 v5, 5, v2')
a.e('v_lshl_add_u32 v8, v5, 5, v8')
a.e('v_add_u32 v8, %d, v8', L_YS + 2048)
for q in range(4):
    a.e('ds_read_b128 %s, v8 offset:%d', vr(40 + 4 * q, 4), (q >> 1) * 128 + (q & 1) * 16)
a.e('s_waitcnt lgkmcnt(0)')
for q in range(8):
    a.e('v_lshlrev_b32 v%d, 16, v%d', T2 + 2 * q, XO + q)
    a.e('v_and_b32 v%d, 0xffff0000, v%d', T2 + 2 * q + 1, XO + q)
for r in range(16):
    a.e('v_add_f32 v%d, v%d, v%d', T2 + r, T2 + r, 40 + r)
    a.e('v_cvt_pk_bf16_f32 v%d, 0, v%d', T2 + r, T2 + r)
    a.e('v_mul_f32 v%d, v%d, v%d', T2 + r, T2 + r, OM)
    a.e('v_cvt_pk_bf16_f32 v%d, 0, v%d', T2 + r, T2 + r)
a.e('Q_nr:')
a.e('s_mov_b64 exec, s[68:69]')
AP = 40
for q in range(4):
    a.e('s_waitcnt lgkmcnt(%d)', 3 - q)
    for h in range(2):
        r = AC2 + 4 * q + 2 * h
        a.e('v_pk_add_f32 %s, %s, %s', vr(r, 2), vr(r, 2), vr(r + 16, 2))
    for h in range(2):
        r = AC2 + 4 * q + 2 * h
        a.e('v_cvt_pk_bf16_f32 v%d, v%d, v%d', AP + 2 * q + h, r, r + 1)
nop(1)
for k in range(2):
    for h in range(2):
        a.e('v_permlane16_swap_b32 v%d, v%d', AP + 4 * k + h, AP + 4 * k + 2 + h)
for k in range(2):
    F = AC2 + 8 * k
    for q in range(4):
        a.e('v_lshlrev_b32 v%d, 16, v%d', F + 2 * q, AP + 4 * k + q)
        a.e('v_and_b32 v%d, 0xffff0000, v%d', F + 2 * q + 1, AP + 4 * k + q)
    for q in range(4):
        a.e('v_pk_mul_f32 %s, %s, %s', vr(F + 2 * q, 2), vr(F + 2 * q, 2), vr(GR + 2, 2))
    for r in range(8):
        a.e('v_cvt_pk_bf16_f32 v%d, 0, v%d', F + r, F + r)
    for q in range(4):
        a.e('v_pk_add_f32 %s, %s, %s', vr(F + 2 * q, 2), vr(F + 2 * q, 2), vr(T2 + 8 * k + 2 * q, 2))
    for q in range(4):
        a.e('v_cvt_pk_bf16_f32 v%d, v%d, v%d', 48 + 4 * k + q, F + 2 * q, F + 2 * q + 1)
    a.e('buffer_store_dwordx4 %s, v%d, %s, 0 offen offset:%d ' + os.environ.get('OFL', 'nt'), vr(48 + 4 * k, 4), VX, sr(S_OUT, 4), 64 * k)
stamp(5, 4)
DIAG = os.environ.get('DIAG', '')
if DIAG:
    di, dw, dg = [int(x) for x in DIAG.split(',')]
    a.e('s_waitcnt vmcnt(0)')
    a.e('s_memrealtime s[64:65]')
    a.e('s_waitcnt lgkmcnt(0)')
    a.e('s_sub_u32 s66, s%d, s80', 80 + 2 * di if di < 11 else 64)
    a.e('s_cmp_eq_u32 s3, %d', dw)
    a.e('s_cselect_b32 s66, s66, 0')
    if dg >= 0:
        a.e('s_cmp_eq_u32 s2, %d', dg)
        a.e('s_cselect_b32 s66, s66, 0')
    a.e('s_lshl_b32 s66, s66, 1')
    a.e('s_add_u32 s66, s66, 6000')
    a.e('DIAG_spin:')
    a.e('s_memrealtime s[64:65]')
    a.e('s_waitcnt lgkmcnt(0)')
    a.e('s_sub_u32 s64, s64, s80')
    a.e('s_cmp_lt_u32 s64, s66')
    a.e('s_cbranch_scc1 DIAG_spin')
elif STAMPS:
    a.e('s_waitcnt vmcnt(0)')
    a.e('s_memrealtime s[64:65]')
    a.e('s_waitcnt lgkmcnt(0)')
    a.e('s_lshl_b32 s66, s2, 3')
    a.e('s_add_u32 s66, s66, s3')
    a.e('s_lshl_b32 s66, s66, 6')
    a.e('s_add_u32 s66, s66, %d', WS_ST)
    a.e('v_mov_b32 v1, s66')
    a.e('s_mov_b64 exec, 1')
    for i in range(12):
        a.e('v_mov_b32 v2, s%d', 80 + 2 * i if i < 11 else 64)
        a.e('buffer_store_dword v2, v1, %s, 0 offen offset:%d', WSR, 4 * i)
        a.e('s_nop 1')
a.e('END:')
a.e('s_endpgm')
for g in range(8):
    a.e('Q_rt%d:', g)
    a.e('s_mov_b32 s59, 0')
    o_soff(g, 67)
    a.e('Q_rl%d:', g)
    if STAMPS == 7:
        a.e('s_add_u32 s100, s100, %d', 1 << (4 * g))
    a.e('s_waitcnt vmcnt(0)')
    a.e('s_add_u32 s59, s59, 1')
    a.e('s_cmp_ge_u32 s59, %d', SPIN)
    spin_rec(7)
    a.e('s_cbranch_scc1 Q_rd%d', g)
    a.e('s_sleep %d', E('OSL', 1))
    o_loads(g, False, 67)
    a.e('s_waitcnt vmcnt(0)')
    emit(o_check(g))
    a.e('s_cbranch_vccnz Q_rl%d', g)
    a.e('Q_rd%d:', g)
    if g + 1 < 8:
        o_soff(g + 1, 67)
        o_loads(g + 1, False, 67)
    a.e('s_branch Q_go%d', g)
a.e('H_eps:')
emit(P[VPOS * per:])
phi_eps(PKH, 16, TT)
nop(2)
for k in range(4):
    emit(kv_mf(k))
a.e('s_branch H_ne')
a.e('CODE_END:')

hdr = open(os.path.join(os.path.dirname(os.path.abspath(__file__)), '..', NAME + '.s.ref')).read().split('; Override launch')[0]
out = hdr + '; @launch grid=(256,1,1) block=(512,1,1) lds=%d\n' % LDS + a.text() + '.section .rodata,"a"\n' + kd(kn, 256)
path = sys.argv[1] if len(sys.argv) > 1 else os.path.join(os.path.dirname(os.path.abspath(__file__)), '..', NAME + '.s')
open(path, 'w').write(out)
```
